```python
import torch

def _softmax(x, axis=-1):
    return torch.softmax(x, dim=axis)
def _gelu(x):
    return torch.nn.functional.gelu(x, approximate="tanh")
def _silu(x):
    return torch.nn.functional.silu(x)
def _sigmoid(x):
    return torch.sigmoid(x)
def _layernorm(x, axis=-1, eps=1e-5):
    m = x.mean(dim=axis, keepdim=True)
    v = x.var(dim=axis, keepdim=True, unbiased=False)
    return (x - m) / torch.sqrt(v + eps)
def _scatter_add(tgt, idx, src, axis=0):
    return tgt.clone().index_add_(axis, idx, src)
def _segment_sum(src, seg, n):
    out = torch.zeros((n,) + src.shape[1:], dtype=src.dtype)
    return out.index_add_(0, seg, src)
def _pad(x, pw):
    flat = tuple(v for pair in reversed(pw) for v in pair)
    return torch.nn.functional.pad(x, flat)

kernel_name = 'parallel_sum__ssm_conv_s4d__moe_arch_mod__prompt'

def setup_inputs():

    _w = (lambda a: (lambda t: t.to(torch.bfloat16) if t.is_floating_point() else t)(torch.as_tensor(a)))
    def _A_setup():
        Bsz, L, D, N = 1, 2048, 448, 256
        return {
            "u": _w((lambda *s: torch.randn(*s, dtype=torch.bfloat16) * 0.05)(Bsz, L, D)),
            "log_A_real": _w((lambda *s: torch.randn(*s, dtype=torch.bfloat16) * 3.2)(D, N) * 0.5),
            "A_imag": _w((lambda *s: torch.randn(*s, dtype=torch.bfloat16) * 0.1)(D, N) * 3.14),
            "C_real": _w((lambda *s: torch.randn(*s, dtype=torch.bfloat16) * 1.6)(D, N) / N ** 0.5),
            "C_imag": _w((lambda *s: torch.randn(*s, dtype=torch.bfloat16) * 1.6)(D, N) / N ** 0.5),
            "log_dt": _w((lambda *s: torch.randn(*s, dtype=torch.bfloat16) * 0.1)(D) * 0.5 - 4.0),
            "D_skip": _w((lambda *s: torch.randn(*s, dtype=torch.bfloat16) * 0.1)(D)),
        }
    _A_in = _A_setup()

    def _B_setup():
        B, S, D, F, C = 1, 2048, 448, 1792, 1
        return {
            "x": _w((lambda *s: torch.randn(*s, dtype=torch.bfloat16) * 0.05)(B, S, D)),
            "w_r": _w((lambda *s: torch.randn(*s, dtype=torch.bfloat16) * 0.05)(D)),
            "w_gate": _w((lambda *s: torch.randn(*s, dtype=torch.bfloat16) * 0.05)(D, F)),
            "w_up": _w((lambda *s: torch.randn(*s, dtype=torch.bfloat16) * 0.05)(D, F)),
            "w_down": _w((lambda *s: torch.randn(*s, dtype=torch.bfloat16) * 0.05)(F, D)),
        }
    _B_in = _B_setup()

    return {
        "A_u": _A_in["u"],
        "A_log_A_real": _A_in["log_A_real"],
        "A_A_imag": _A_in["A_imag"],
        "A_C_real": _A_in["C_real"],
        "A_C_imag": _A_in["C_imag"],
        "A_log_dt": _A_in["log_dt"],
        "A_D_skip": _A_in["D_skip"],
        "B_x": _B_in["x"],
        "B_w_r": _B_in["w_r"],
        "B_w_gate": _B_in["w_gate"],
        "B_w_up": _B_in["w_up"],
        "B_w_down": _B_in["w_down"],
    }

def reference(A_u, A_log_A_real, A_A_imag, A_C_real, A_C_imag, A_log_dt, A_D_skip, B_x, B_w_r, B_w_gate, B_w_up, B_w_down):
    def _A_ref(u, log_A_real, A_imag, C_real, C_imag, log_dt, D_skip):
        L = u.shape[1]
        dt = torch.exp(log_dt)
        A = -torch.exp(log_A_real) + 1j * A_imag
        C = (C_real + 1j * C_imag) * dt[:, None]
        pos = (lambda x, dt: x.to(dt))(torch.arange(L), log_dt.dtype)
        P = torch.exp((A * dt[:, None])[:, :, None] * pos[None, None, :])
        K = 2.0 * torch.einsum("dn,dnl->dl", C, P).real
        L2 = 2 * L
        u_t = (lambda x, *d: x.permute(*d))(u, 0, 2, 1)
        Kf = (lambda x, *a, **k: torch.fft.rfft(x.float(), *a, **k))(K, L2)
        Uf = (lambda x, *a, **k: torch.fft.rfft(x.float(), *a, **k))(u_t, L2)
        y = (lambda x, *a, **k: torch.fft.irfft(x, *a, **k).to(torch.bfloat16))(Uf * Kf[None, :, :], L2)[:, :, :L]
        y = (lambda x, *d: x.permute(*d))(y, 0, 2, 1)
        return y + u * D_skip[None, None, :]

    def _B_ref(x, w_r, w_gate, w_up, w_down):
        B, S, D = x.shape
        C = 1
        r = x @ w_r
        idx = torch.argsort(-r, axis=-1)[:, :C]
        idx_e = (lambda x, n, axis: torch.repeat_interleave(x, n, dim=axis))(idx.reshape(B, C, 1), D, axis=2)
        x_sel = (lambda x, i, axis: torch.take_along_dim(x, i, dim=axis))(x, idx_e, axis=1)
        g = _silu(x_sel @ w_gate)
        u = x_sel @ w_up
        y = (g * u) @ w_down
        r_sel = _sigmoid((lambda x, i, axis: torch.take_along_dim(x, i, dim=axis))(r, idx, axis=1))
        y = y * r_sel.reshape(B, C, 1)
        b_off = (torch.arange(B) * S).reshape(B, 1)
        flat_idx = (idx + b_off).reshape(B * C)
        zero = (x * 0.0).reshape(B * S, D)
        upd = _scatter_add(zero, flat_idx, y.reshape(B * C, D), axis=0)
        return x + upd.reshape(B, S, D)

    x = A_u
    xn = _layernorm(x, axis=-1)
    return x + _A_ref(xn, A_log_A_real, A_A_imag, A_C_real, A_C_imag, A_log_dt, A_D_skip) + _B_ref(xn, B_w_r, B_w_gate, B_w_up, B_w_down)
```

```python
KNAME = "parallel_sum__ssm_conv_s4d__moe_arch_mod__prompt_kernel"

HEADER = """; Kernarg layout for this problem (120 bytes, ptrs only, base s[0:1]):
"""

class Asm:
    def __init__(self):
        self.lines = []
    def __call__(self, s):
        for l in s.strip("\n").split("\n"):
            self.lines.append("    " + l.strip() if not l.strip().endswith(":") else l.strip())
    def text(self):
        return "\n".join(self.lines) + "\n"

def kernel_text(name, body, vgpr, sgpr=96, accum=None):
    if accum is None:
        accum = (min(vgpr, 256) + 3) // 4 * 4
    code = f""".text
.globl {name}
.p2align 8
.type {name},@function
{name}:
{body}"""
    desc = f""".section .rodata,"a"
.p2align 6
.amdhsa_kernel {name}
  .amdhsa_next_free_vgpr {vgpr}
  .amdhsa_next_free_sgpr {sgpr}
  .amdhsa_accum_offset {accum}
  .amdhsa_group_segment_fixed_size 0
  .amdhsa_kernarg_size 120
  .amdhsa_user_sgpr_count 2
  .amdhsa_user_sgpr_kernarg_segment_ptr 1
  .amdhsa_system_sgpr_workgroup_id_x 1
  .amdhsa_float_denorm_mode_32 3
.end_amdhsa_kernel
"""
    return code, desc

def single_file(body, grid, block, lds, vgpr, sgpr=96, accum=None, name=KNAME):
    code, desc = kernel_text(name, body, vgpr, sgpr, accum)
    return HEADER + f"; @launch grid=({grid},1,1) block=({block},1,1) lds={lds}\n" + '.amdgcn_target "amdgcn-amd-amdhsa--gfx950"\n' + code + desc

def list_file(kernels):
    s = HEADER
    for k in kernels:
        s += f"; @launch kernel={k['name']} grid=({k['grid']},1,1) block=({k['block']},1,1) lds={k['lds']}\n"
    s += '.amdgcn_target "amdgcn-amd-amdhsa--gfx950"\n'
    seen = set(); descs = ""
    for k in kernels:
        if k['name'] in seen: continue
        seen.add(k['name'])
        c, d = kernel_text(k['name'], k['body'], k['vgpr'], k.get('sgpr', 96), k.get('accum'))
        s += c; descs += d
    return s + descs
```

```python
import re
REG = re.compile(r'\b([vas])(\d+)\b|\b([vas])\[(\d+):(\d+)\]|\b(vcc|exec|m0)\b')
TRANS = ("v_exp_f32","v_log_f32","v_rcp_f32","v_rsq_f32","v_sqrt_f32","v_sin_f32","v_cos_f32")
def regs_of(tok):
    out = set()
    for m in REG.finditer(tok):
        if m.group(1): out.add((m.group(1), int(m.group(2))))
        elif m.group(3): out.update((m.group(3), i) for i in range(int(m.group(4)), int(m.group(5)) + 1))
        else: out.add((m.group(6), 0))
    return out
class I:
    def __init__(self, line):
        self.line = line
        s = line.split(";")[0].strip()
        self.label = s.endswith(":")
        self.empty = (s == "") or s.startswith(".")
        self.op = ""; self.dst = set(); self.src = set(); self.srcC = set(); self.srcAB = set()
        if self.label or self.empty: return
        p = s.split(None, 1)
        self.op = op = p[0]
        rest = p[1] if len(p) > 1 else ""
        ops = [o.strip() for o in re.split(r',(?![^\[]*\])', rest)] if rest else []
        self.valu = op.startswith("v_") and not op.startswith("v_mfma")
        self.mfma = op.startswith("v_mfma")
        self.ds = op.startswith("ds_"); self.vmem = op.startswith(("global_", "buffer_"))
        self.salu = op.startswith("s_")
        self.dpp = "_dpp" in op or any(k in rest for k in ("quad_perm", "row_shr", "row_shl", "row_ror", "row_bcast", "row_mirror", "row_half_mirror", "row_newbcast"))
        self.trans = op.replace("_e32","").replace("_e64","") in TRANS
        self.wide_store = self.vmem and "store" in op and ("x3" in op or "x4" in op)
        self.passes = 0
        if self.mfma:
            self.passes = 8 if "32x32x16" in op else 4
            self.dst = regs_of(ops[0]); self.srcAB = regs_of(ops[1]) | regs_of(ops[2]); self.srcC = regs_of(ops[3])
            self.src = self.srcAB | self.srcC
        elif self.valu:
            self.dst = regs_of(ops[0])
            k = 1
            if "_co_" in op: self.dst |= regs_of(ops[1]); k = 2
            for o in ops[k:]: self.src |= regs_of(o)
            if op.startswith(("v_fmac", "v_dot2c", "v_permlane", "v_writelane")) or (self.dpp and ("bank_mask" in rest or "row_mask" in rest)): self.src |= regs_of(ops[0])
            if op.startswith("v_permlane"): self.dst |= regs_of(ops[1])
            if op.startswith("v_cmpx"): self.dst.add(("exec", 0))
        elif self.ds:
            if op.startswith(("ds_read", "ds_bpermute", "ds_permute", "ds_swizzle")) or "_rtn" in op:
                self.dst = regs_of(ops[0])
                for o in ops[1:]: self.src |= regs_of(o)
            else:
                for o in ops: self.src |= regs_of(o)
            if "addtid" in op: self.src.add(("m0", 0))
        elif self.vmem:
            if "load" in op and " lds" not in rest and "load_lds" not in op:
                self.dst = regs_of(ops[0])
                for o in ops[1:]: self.src |= regs_of(o)
            else:
                for o in ops: self.src |= regs_of(o)
                if self.wide_store:
                    self.data = regs_of(ops[1]) if op.startswith("global_") else regs_of(ops[0])
        elif self.salu:
            if ops and not op.startswith(("s_cmp", "s_cbranch", "s_branch", "s_waitcnt", "s_nop", "s_barrier", "s_sleep", "s_setprio", "s_endpgm", "s_bitcmp")):
                self.dst = regs_of(ops[0])
                for o in ops[1:]: self.src |= regs_of(o)
                if "saveexec" in op: self.dst.add(("exec", 0))
            else:
                for o in ops: self.src |= regs_of(o)
    def states(self):
        if self.op == "s_nop": return int(self.line.split(";")[0].split()[1], 0) + 1
        return 1
isv = lambda r: r[0] in "va" and r[0] != "vcc"
iss = lambda r: r[0] in ("s", "vcc")
def need(p, c):
    n = 0
    vd = {r for r in p.dst if isv(r)}; sd = {r for r in p.dst if iss(r)}
    if p.valu:
        if c.valu and c.dpp and vd & c.src: n = max(n, 2)
        if c.op.startswith(("v_readlane", "v_readfirstlane")) and vd & c.src: n = max(n, 1)
        if c.op.startswith("v_permlane") and vd & c.src: n = max(n, 2)
        if c.mfma and vd & c.src: n = max(n, 2)
        if p.trans and c.valu and not c.trans and vd & c.src: n = max(n, 1)
        if p.trans and (c.ds or c.vmem) and vd & c.src: n = max(n, 1)
        if sd & c.src:
            if c.op.startswith(("v_readlane", "v_writelane")): n = max(n, 4)
            elif c.valu: n = max(n, 2)
            elif c.vmem: n = max(n, 5)
        if ("exec", 0) in p.dst:
            if c.valu and c.dpp: n = max(n, 5)
            if c.mfma or c.op.startswith(("v_readlane", "v_readfirstlane", "v_writelane", "v_permlane")): n = max(n, 4)
        if ("op_sel" in p.line or "sdwa" in p.op) and c.valu and vd & (c.src | c.dst): n = max(n, 1)
        if p.op.startswith("v_dot") and (c.valu or c.mfma or c.ds or c.vmem) and vd & (c.src | c.dst):
            if not (c.op == p.op and c.dst == p.dst): n = max(n, 3)
    if p.salu and ("m0", 0) in p.dst and ("m0", 0) in c.src and not c.salu: n = max(n, 1)
    if p.mfma:
        t = {4: 0, 8: 1}[p.passes]
        if c.mfma:
            if vd & c.srcAB: n = max(n, (8, 12)[t])
            if vd & c.srcC and not (vd == c.srcC and c.passes == p.passes): n = max(n, (6, 10)[t])
            if vd & c.dst and not (vd & c.srcC): n = max(n, (6, 10)[t])
        elif (c.valu or c.ds or c.vmem) and vd & (c.src | c.dst): n = max(n, (8, 12)[t])
        if c.valu and p.srcC & c.dst: n = max(n, (3, 7)[t])
    if p.vmem and p.wide_store and p.data & c.dst: n = max(n, 2)
    return n
def fix(text, report=None):
    ins = [I(l) for l in text.split("\n")]
    out = []; hist = []
    for x in ins:
        if x.label or x.empty:
            out.append(x.line); continue
        worst = 0; dist = 0
        for p in reversed(hist[-14:]):
            r = need(p, x) - dist
            if r > worst: worst = r
            dist += p.states()
            if dist >= 12: break
        if worst > 0:
            nop = I(f"    s_nop {worst-1}")
            out.append(nop.line); hist.append(nop)
            if report is not None: report.append((worst, x.line.strip()))
        out.append(x.line); hist.append(x)
    return "\n".join(out)
```

```python
import sys, struct
from asmlib import *
import hz

def f2u(x): return struct.unpack("<I", struct.pack("<f", x))[0]

WS_E    = 0x0
WS_CAND = 0x1000
WS_XN   = 0x100000
WS_Y    = 0x300000
Y_PART  = 224 * 8192
Y_IDX   = Y_PART + 4096
WS_STAMP= 0x800000
RS    = 1040
CHS   = 53 * RS
LNX   = 110336
LNN   = LNX + 7680
CANDL = LNN + 7680
ZB    = CANDL + 128
KC    = ZB + 16
KCS   = 1568
TT    = 129024
TCS   = 2240
TTS   = 4 * TCS
U     = TT + 2 * TTS
US    = 4672
LDS_BYTES = ZB + 32768
YL    = 0
YP    = 16384
FXN = 0; FXR = 1024; FGP = 2048; FH = 8192
TAGM = 0x60006000
BIAS = (68 << 7) * 0x10001
SPIN = 200000

def gen(opt):
    diag = opt.get("diag", False)
    a = Asm()
    nst = [0]
    def stamp(i):
        if diag: a(f"s_memrealtime s[{64+2*i}:{65+2*i}]\ns_waitcnt lgkmcnt(0)")
    sWV="s3"; sTB="s6"; sPR="s7"; sCH="s40"; sQ="s41"; sHI="s42"; sP="s43"; sT0="s44"; sT1="s45"; sT2="s46"; sT3="s47"
    sLD="s48"; sIDX="s49"; sCNT="s50"; sFI="s51"; sDEC=52
    sMSK=56
    X="s[8:9]"; LOGA="s[10:11]"; AIM="s[12:13]"; CRE="s[14:15]"; CIM="s[16:17]"; LDT="s[18:19]"; DSK="s[20:21]"
    WR="s[24:25]"; WG_="s[26:27]"; WU="s[28:29]"; WD="s[30:31]"; OUT="s[32:33]"; WS="s[34:35]"
    YB="s[22:23]"; XNB="s[60:61]"
    if diag: a("s_memrealtime s[64:65]")
    a(f"""
    s_cmp_ge_u32 s2, 256
    s_cbranch_scc1 L_end
    s_load_dwordx16 s[8:23], s[0:1], 0
    s_load_dwordx8 s[24:31], s[0:1], 64
    s_load_dwordx2 {OUT}, s[0:1], 96
    s_load_dwordx2 {WS}, s[0:1], 112
    s_getpc_b64 s[4:5]
    L_pc:
    v_lshrrev_b32 v2, 6, v0
    v_lshrrev_b32 v3, 2, v0
    v_readfirstlane_b32 {sWV}, v2
    v_lshlrev_b32 v3, 7, v3
    v_min_u32 v3, L_code_end-L_pc-4, v3
    global_load_dword v9, v3, s[4:5]
    v_and_b32 v1, 63, v0
    s_and_b32 {sT0}, s2, 7
    s_lshr_b32 {sT1}, s2, 3
    s_lshl_b32 {sTB}, {sT0}, 5
    s_add_u32 {sTB}, {sTB}, {sT1}
    s_mul_i32 {sPR}, {sT0}, 28
    s_add_u32 {sPR}, {sPR}, {sT1}
    s_lshl_b32 {sT2}, {sTB}, 3
    s_add_u32 {sT2}, {sT2}, {sWV}
    s_mul_i32 {sT3}, {sT2}, 896
    v_lshlrev_b32 v4, 4, v1
    v_add_u32 v5, {sT3}, v4
    s_bfe_u32 {sCH}, {sWV}, 0x10001
    s_and_b32 {sQ}, {sWV}, 1
    s_cmp_ge_u32 {sWV}, 4
    s_cselect_b32 {sT0}, 3, 0
    s_xor_b32 {sQ}, {sQ}, {sT0}
    s_sub_u32 {sFI}, s2, 224
    v_mov_b32 v36, -1
    v_mov_b32 v37, -1
    v_mov_b32 v38, -1
    v_mov_b32 v39, -1
    v_lshlrev_b32 v6, 4, v0
    s_cmp_ge_u32 s2, 224
    s_cselect_b32 {sT0}, s2, {sPR}
    s_lshl_b32 {sT0}, {sT0}, 13
    v_add_u32 v7, {sT0}, v6
    s_mov_b32 exec_hi, 0x00ffffff
    s_waitcnt lgkmcnt(0)
    global_load_dwordx4 v[10:13], v5, {X}
    s_mov_b32 exec_hi, -1
    s_load_dwordx4 s[36:39], {WS}, {WS_E}
    s_add_u32 s22, s34, {WS_Y}
    s_addc_u32 s23, s35, 0
    s_add_u32 s60, s34, {WS_XN}
    s_addc_u32 s61, s35, 0
    global_store_dwordx4 v7, v[36:39], {YB} sc1
    s_mov_b32 exec_hi, 0x00ffffff
    global_load_dwordx4 v[14:17], v4, {WR}
    s_mov_b32 exec_hi, -1
    s_cmp_ge_u32 s2, 224
    s_cbranch_scc1 L_pro_ffn
    """)
    a(f"""
    s_lshl_b32 {sT0}, {sPR}, 1
    s_add_u32 {sT0}, {sT0}, {sCH}
    s_lshl_b32 {sT0}, {sT0}, 9
    s_lshl_b32 {sT1}, {sQ}, 7
    s_add_u32 {sT0}, {sT0}, {sT1}
    v_lshl_add_u32 v8, v1, 1, {sT0}
    global_load_ushort v40, v8, {LOGA}
    global_load_ushort v41, v8, {AIM}
    global_load_ushort v42, v8, {CRE}
    global_load_ushort v43, v8, {CIM}
    s_lshl_b32 {sT0}, {sPR}, 2
    s_load_dword {sLD}, {LDT}, {sT0}
    """)
    a(f"""
    v_mov_b32 v44, 0
    v_mov_b32 v45, 0
    v_mov_b32 v46, 0
    v_mov_b32 v47, 0
    v_add_u32 v48, {ZB}, v6
    ds_write_b128 v48, v[44:47]
    ds_write_b128 v48, v[44:47] offset:8192
    ds_write_b128 v48, v[44:47] offset:16384
    ds_write_b128 v48, v[44:47] offset:24576
    """)
    a(f"""
    s_lshl_b32 {sT0}, {sQ}, 8
    s_sub_u32 {sT0}, 1023, {sT0}
    v_lshlrev_b32 v50, 2, v1
    v_sub_u32 v50, {sT0}, v50
    s_mul_i32 {sT1}, {sCH}, {KCS}
    s_add_u32 {sT1}, {sT1}, {KC}
    s_movk_i32 {sT2}, 0x4280
    s_movk_i32 {sT3}, 128
    """)
    for i in range(7):
        a(f"""
        v_subrev_u32 v51, {i}, v50
        v_max_i32 v52, 0, v51
        v_cvt_f32_u32 v52, v52
        v_min_i32 v51, {sT3}, v51
        v_cvt_pk_bf16_f32 v52, v52, 0
        v_subrev_u32 v52, {sT2}, v52
        v_max_i32 v51, v51, v52
        v_lshl_add_u32 v{100+i}, v51, 1, {sT1}
        """)
    a(f"""
    s_mul_i32 {sT2}, {sCH}, {TTS}
    s_add_u32 {sT2}, {sT2}, {TT}
    s_lshl_b32 {sT3}, {sQ}, 9
    s_add_u32 {sT3}, {sT3}, {sT2}
    s_add_u32 {sT3}, {sT3}, 64
    v_lshl_add_u32 v107, v1, 3, {sT3}
    v_and_b32 v2, 15, v1
    v_lshrrev_b32 v3, 4, v1
    v_add_u32 v51, v2, v3
    v_mov_b32 v52, 511
    v_cmp_gt_u32 vcc, 18, v51
    v_addc_co_u32 v52, vcc, 0, v52, vcc
    v_cmp_gt_u32 vcc, 11, v51
    v_addc_co_u32 v52, vcc, 0, v52, vcc
    v_cmp_le_u32 vcc, 4, v51
    v_cndmask_b32 v52, -1, v52, vcc
    v_lshl_add_u32 v108, v52, 1, {sT1}
    v_mul_u32_u24 v51, {TCS}, v3
    v_lshl_add_u32 v51, v2, 1, v51
    v_add3_u32 v109, v51, {sT2}, 32
    v_sub_u32 v51, 15, v2
    v_and_b32 v52, 3, v51
    v_sub_u32 v51, v51, v52
    v_lshl_add_u32 v51, v3, 3, v51
    v_mul_u32_u24 v52, {TCS}, v52
    v_lshl_add_u32 v51, v51, 1, v52
    v_add_u32 v110, {sT2}, v51
    s_mul_i32 {sT0}, {sCH}, {US}
    s_lshl_b32 {sT3}, {sQ}, 10
    s_add_u32 {sT0}, {sT0}, {sT3}
    s_add_u32 {sT0}, {sT0}, {U + 448 - 2048}
    v_lshlrev_b32 v51, 5, v2
    v_lshl_add_u32 v51, v3, 4, v51
    v_add_u32 v111, {sT0}, v51
    s_mul_i32 {sT0}, {sCH}, {CHS}
    s_lshl_b32 {sT3}, {sQ}, 8
    s_add_u32 {sT0}, {sT0}, {sT3}
    s_mov_b32 m0, {sT0}
    v_and_b32 v51, 31, v1
    v_lshrrev_b32 v52, 5, v1
    v_mul_u32_u24 v53, {RS}, v51
    v_lshl_add_u32 v53, v52, 4, v53
    v_add_u32 v112, {sT0}, v53
    v_mul_u32_u24 v53, {RS}, v3
    v_lshl_add_u32 v53, v2, 4, v53
    v_add_u32 v113, {sT0}, v53
    s_and_b32 {sT0}, {sWV}, 1
    s_lshr_b32 {sT3}, {sWV}, 1
    s_mul_i32 {sT1}, {sT0}, {CHS}
    s_mul_i32 {sT2}, {sT3}, {4*RS}
    s_add_u32 {sT1}, {sT1}, {sT2}
    v_add_u32 v114, {sT1}, v53
    s_mul_i32 {sT0}, {sT0}, {KCS}
    s_lshl_b32 {sT1}, {sT3}, 9
    s_add_u32 {sT0}, {sT0}, {sT1}
    s_add_u32 {sT0}, {sT0}, {KC}
    s_cmp_eq_u32 {sT3}, 0
    s_cselect_b32 {sT1}, 3, 8
    v_lshlrev_b32 v53, {sT1}, v52
    s_cselect_b32 {sT1}, 4, 1
    s_cselect_b32 {sT2}, 4, 128
    s_cmp_eq_u32 {sT3}, 1
    s_cselect_b32 {sT1}, 3, {sT1}
    s_cselect_b32 {sP}, 1, 0
    v_and_b32 v54, {sP}, v52
    v_sub_u32 v54, {sT1}, v54
    v_lshlrev_b32 v54, v54, v51
    v_add3_u32 v115, v53, v54, {sT0}
    s_cmp_eq_u32 {sT3}, 2
    s_cselect_b32 {sT0}, 64, 2
    s_cselect_b32 {sT1}, 128, 4
    v_mov_b32 v53, {sT1}
    v_mov_b32 v54, {sT2}
    v_cmp_eq_u32 vcc, 0, v52
    v_cndmask_b32 v53, v54, v53, vcc
    v_add_u32 v116, {sT0}, v115
    v_add_u32 v117, v53, v115
    v_add_u32 v118, {sT0}, v117
    s_branch L_ln
    """)
    a(f"""
    L_pro_ffn:
    global_load_dword v40, v3, s[4:5]
    global_load_dword v41, v3, s[4:5]
    global_load_dword v42, v3, s[4:5]
    global_load_dword v43, v3, s[4:5]
    v_and_b32 v2, 15, v1
    v_lshrrev_b32 v3, 4, v1
    """)
    a(f"""
    L_ln:
    s_mov_b32 {sHI}, 0xffff0000
    s_mul_i32 {sT0}, {sWV}, 960
    s_add_u32 {sT0}, {sT0}, {LNX}
    v_add_u32 v18, {sT0}, v4
    v_mov_b32 v44, 0
    v_mov_b32 v45, 0
    v_mov_b32 v46, 0
    v_and_b32 v50, 0x1f0, v0
    v_and_b32 v51, 3, v0
    v_lshlrev_b32 v50, 1, v50
    v_lshl_add_u32 v50, v51, 3, v50
    v_bfe_u32 v51, v0, 2, 2
    v_mul_u32_u24 v51, 960, v51
    v_add_u32 v50, v50, v51
    v_add_u32 v19, {LNX}, v50
    s_mul_i32 {sT0}, {sTB}, 7168
    v_add_u32 v49, {sT0}, v6
    s_waitcnt lgkmcnt(0)
    """)
    for i in range(4):
        a(f"s_andn2_b32 s{sMSK+i}, {TAGM}, s{36+i}\ns_sub_u32 s{sDEC+i}, {BIAS}, s{sMSK+i}")
    a("s_mov_b32 exec_hi, 0x00ffffff\ns_waitcnt vmcnt(6)")
    stamp(1)
    for i in range(4):
        a(f"v_lshlrev_b32 v{20+2*i}, 16, v{10+i}\nv_and_b32 v{21+2*i}, {sHI}, v{10+i}")
    a(f"v_readfirstlane_b32 {sP}, v20\nds_write_b128 v18, v[10:13]")
    for i in range(8): a(f"v_subrev_f32 v{28+i}, {sP}, v{20+i}")
    a(f"""
    v_add_f32 v44, v28, v29
    v_mul_f32 v45, v28, v28
    v_add_f32 v50, v30, v31
    v_mul_f32 v51, v29, v29
    v_add_f32 v52, v32, v33
    v_fmac_f32 v45, v30, v30
    v_add_f32 v53, v34, v35
    v_fmac_f32 v51, v31, v31
    v_add_f32 v44, v44, v50
    v_fmac_f32 v45, v32, v32
    v_add_f32 v52, v52, v53
    v_fmac_f32 v51, v33, v33
    v_fmac_f32 v45, v34, v34
    v_fmac_f32 v51, v35, v35
    v_add_f32 v44, v44, v52
    v_add_f32 v45, v45, v51
    s_mov_b32 exec_hi, -1
    v_permlane32_swap_b32 v44, v45
    v_add_f32 v44, v44, v45
    v_add_f32_dpp v44, v44, v44 row_ror:8 row_mask:0xf bank_mask:0xf
    v_add_f32_dpp v44, v44, v44 row_ror:4 row_mask:0xf bank_mask:0xf
    v_add_f32_dpp v44, v44, v44 row_ror:2 row_mask:0xf bank_mask:0xf
    v_add_f32_dpp v44, v44, v44 row_ror:1 row_mask:0xf bank_mask:0xf
    v_add_f32_dpp v44, v44, v44 row_bcast:15 row_mask:0xa bank_mask:0xf
    v_mul_f32 v44, {hex(f2u(1.0/448))}, v44
    v_readlane_b32 {sT0}, v44, 16
    v_readlane_b32 {sT1}, v44, 48
    v_mov_b32 v50, {sT0}
    v_fma_f32 v51, -v50, v50, {sT1}
    v_add_f32 v50, {sP}, v50
    v_max_f32 v51, 0, v51
    v_cvt_pk_bf16_f32 v50, v50, v51
    v_and_b32 v51, {sHI}, v50
    v_lshlrev_b32 v57, 16, v50
    v_add_f32 v51, {hex(f2u(1e-5))}, v51
    v_sub_f32 v20, v20, v57
    v_cvt_pk_bf16_f32 v51, 0, v51
    v_sub_f32 v21, v21, v57
    v_sqrt_f32 v51, v51
    v_sub_f32 v22, v22, v57
    v_sub_f32 v23, v23, v57
    v_cvt_pk_bf16_f32 v51, 0, v51
    v_sub_f32 v24, v24, v57
    v_rcp_f32 v58, v51
    v_sub_f32 v25, v25, v57
    v_sub_f32 v26, v26, v57
    v_sub_f32 v27, v27, v57
    v_mul_f32 v52, {hex(f2u(2.0**-68))}, v58
    """)
    for i in range(4): a(f"v_cvt_pk_bf16_f32 v{28+i}, v{20+2*i}, v{21+2*i}")
    for i in range(4): a(f"v_lshlrev_b32 v{20+2*i}, 16, v{28+i}\nv_and_b32 v{21+2*i}, {sHI}, v{28+i}")
    for i in range(8): a(f"v_mul_f32 v{20+i}, v52, v{20+i}")
    for i in range(4): a(f"v_cvt_pk_bf16_f32 v{28+i}, v{20+2*i}, v{21+2*i}")
    a(f"""
    s_mov_b32 exec_hi, 0x00ffffff
    ds_write_b128 v18, v[28:31] offset:7680
    s_mov_b32 {sT0}, {BIAS}
    """)
    for i in range(4): a(f"v_add_u32 v{32+i}, {sT0}, v{28+i}")
    a("s_waitcnt vmcnt(4)")
    for i in range(4): a(f"v_dot2c_f32_bf16 v46, v{32+i}, v{14+i}")
    a(f"""
    s_mov_b32 exec_hi, -1
    s_waitcnt lgkmcnt(0)
    s_barrier
    s_cmp_eq_u32 {sWV}, 7
    s_cbranch_scc1 L_nogran
    ds_read_b64_tr_b16 v[20:21], v19 offset:7680
    ds_read_b64_tr_b16 v[22:23], v19 offset:{7680+3840}
    L_nogran:
    v_add_f32_dpp v46, v46, v46 row_ror:8 row_mask:0xf bank_mask:0xf
    v_add_f32_dpp v46, v46, v46 row_ror:4 row_mask:0xf bank_mask:0xf
    v_add_f32_dpp v46, v46, v46 row_ror:2 row_mask:0xf bank_mask:0xf
    v_add_f32_dpp v46, v46, v46 row_ror:1 row_mask:0xf bank_mask:0xf
    s_cbranch_scc1 L_nogran2
    s_waitcnt lgkmcnt(0)
    """)
    for i in range(4): a(f"v_or_b32 v{20+i}, s{sMSK+i}, v{20+i}")
    a(f"""
    global_store_dwordx4 v49, v[20:23], {XNB} sc1
    L_nogran2:
    s_nop 0
    v_add_f32_dpp v46, v46, v46 row_bcast:15 row_mask:0xa bank_mask:0xf
    s_lshl_b32 {sT2}, {sTB}, 3
    s_add_u32 {sT2}, {sT2}, {sWV}
    v_add_f32_dpp v46, v46, v46 row_bcast:31 row_mask:0xc bank_mask:0xf
    s_lshl_b32 {sT0}, {sWV}, 4
    s_add_u32 {sT0}, {sT0}, {CANDL}
    v_cvt_pk_bf16_f32 v46, 0, v46
    v_mov_b32 v50, {sT0}
    v_or_b32 v56, {sT2}, v46
    s_not_b32 {sT1}, s39
    v_mov_b32 v59, {sT1}
    s_mov_b32 exec_lo, 0
    s_mov_b32 exec_hi, 0x80000000
    ds_write_b128 v50, v[56:59]
    s_mov_b64 exec, -1
    s_waitcnt lgkmcnt(0)
    s_barrier
    """)
    stamp(2)
    a(f"""
    s_cmp_lg_u32 {sWV}, 7
    s_cbranch_scc1 L_nocand
    v_and_b32 v50, 7, v1
    v_lshlrev_b32 v50, 4, v50
    v_add_u32 v50, {CANDL}, v50
    ds_read_b128 v[56:59], v50
    s_lshl_b32 {sT0}, {sTB}, 4
    s_add_u32 {sT0}, {sT0}, {WS_CAND}
    v_mov_b32 v51, {sT0}
    s_waitcnt lgkmcnt(0)
    v_max_f32_dpp v50, v56, v56 row_ror:4 row_mask:0xf bank_mask:0xf
    v_max_f32_dpp v50, v50, v50 row_ror:2 row_mask:0xf bank_mask:0xf
    v_max_f32_dpp v50, v50, v50 row_ror:1 row_mask:0xf bank_mask:0xf
    v_cmp_eq_u32 vcc, v50, v56
    s_and_b32 exec_lo, vcc_lo, 0xff
    s_mov_b32 exec_hi, 0
    global_store_dwordx4 v51, v[56:59], {WS} sc1
    s_mov_b64 exec, -1
    L_nocand:
    s_cmp_ge_u32 s2, 224
    s_cbranch_scc1 L_ffn
    """)
    LOG2E = hex(f2u(1.4426950408889634))
    a(f"""
    s_lshl_b32 {sT0}, {sLD}, 16
    s_and_b32 {sT1}, {sLD}, {sHI}
    s_cmp_eq_u32 {sCH}, 0
    s_cselect_b32 {sT0}, {sT0}, {sT1}
    s_mov_b32 {sT1}, {LOG2E}
    v_mov_b32 v50, {sT0}
    v_mul_f32 v50, {sT1}, v50
    s_waitcnt vmcnt(1)
    v_lshlrev_b32 v40, 16, v40
    v_exp_f32 v50, v50
    v_mul_f32 v40, {sT1}, v40
    v_lshlrev_b32 v41, 16, v41
    v_exp_f32 v40, v40
    v_cvt_pk_bf16_f32 v50, 0, v50
    v_lshlrev_b32 v42, 16, v42
    v_lshlrev_b32 v43, 16, v43
    v_cvt_pk_bf16_f32 v40, 0, v40
    v_mul_f32 v41, v50, v41
    v_add_f32 v51, v50, v50
    v_mul_f32 v40, v50, v40
    v_mul_f32 v41, 0.15915494, v41
    v_mul_f32 v40, {hex(f2u(-1.4426950408889634))}, v40
    v_mul_f32 v42, v51, v42
    v_mul_f32 v43, v51, v43
    """)
    for (p, r, t) in ((1, 60, 20), (8, 63, 24), (128, 66, 28)):
        if p == 1: a(f"v_exp_f32 v{t}, v40\nv_fract_f32 v{t+1}, v41")
        else: a(f"v_mul_f32 v{t}, {hex(f2u(p))}, v40\nv_mul_f32 v{t+1}, {hex(f2u(p))}, v41\nv_exp_f32 v{t}, v{t}\nv_fract_f32 v{t+1}, v{t+1}")
    for (p, r, t) in ((1, 60, 20), (8, 63, 24), (128, 66, 28)):
        a(f"v_cos_f32 v{t+2}, v{t+1}\nv_sin_f32 v{t+3}, v{t+1}")
    for (p, r, t) in ((1, 60, 20), (8, 63, 24), (128, 66, 28)):
        a(f"v_mul_f32 v{r}, v{t}, v{t+2}\nv_mul_f32 v{r+1}, v{t}, v{t+3}")
    for r in (60, 63, 66): a(f"v_sub_f32 v{r+2}, 0, v{r+1}")
    tmp = [0]
    def put(row, re, im, conj):
        t = 52 + tmp[0] % 4; tmp[0] += 1
        return [f"v_cvt_pk_bf16_f32 v{t}, v{re}, {'-' if conj else ''}v{im}", f"ds_write_addtid_b32 v{t} offset:{row*RS}"]
    def cmul(d, x, w):
        return [f"v_mul_f32 v{d}, v{x}, v{w}", f"v_mul_f32 v{d+1}, v{x}, v{w+1}",
                f"v_fmac_f32 v{d}, v{x+1}, v{w+2}", f"v_fmac_f32 v{d+1}, v{x+1}, v{w}"]
    def inter(x, y):
        for i in range(max(len(x), len(y))):
            if i < len(x): a(x[i])
            if i < len(y): a(y[i])
    G0 = 21
    inter(cmul(69, 66, 66) + ["v_sub_f32 v71, 0, v70"], cmul(72, 60, 60) + ["v_sub_f32 v74, 0, v73"])
    inter(cmul(75, 72, 72) + ["v_sub_f32 v77, 0, v76"], ["v_mov_b32 v51, 0x3f80", f"ds_write_addtid_b32 v51 offset:{G0*RS}"] + put(0, 42, 43, True))
    inter(put(G0 + 1, 63, 64, False), put(G0 + 16, 66, 67, False))
    ga = []; src = 63
    for j in range(2, 16):
        d = 20 + 2 * (j & 1); ga.append((d, src, 63, G0 + j, False)); src = d
    gb = []; src = 66
    for j in range(17, 32):
        d = 24 + 2 * (j & 1); gb.append((d, src, 63, G0 + j, False)); src = d
    fa = []; src = 42
    for h in range(1, 8):
        d = 28 + 2 * (h & 1); fa.append((d, src, 60, h, True)); src = d
    fb = [(80, 42, 69, 8, True), (82, 80, 69, 12, True), (84, 82, 69, 14, True)]
    src = 84
    for k in range(5):
        d = 32 + 2 * (k & 1); fb.append((d, src, 69, 16 + k, True)); src = d
    fc = [(28, 80, 72, 9, True), (30, 28, 72, 10, True), (28, 30, 72, 11, True), (30, 82, 75, 13, True), (28, 84, 75, 15, True)]
    A_ = ga + fa + fc[:3]
    B_ = fb + gb + [(32, 82, 75, 13, True), (34, 84, 75, 15, True)]
    for i in range(max(len(A_), len(B_))):
        xs = []
        for L in (A_, B_):
            if i < len(L):
                d, s_, w, row, cj = L[i]
                xs.append(cmul(d, s_, w) + put(row, d, d + 1, cj))
            else: xs.append([])
        inter(xs[0], xs[1])
    stamp(3)
    for st in range(8):
        a(f"ds_read_b128 v[{120+8*st}:{123+8*st}], v112 offset:{32*st}")
        a(f"ds_read_b128 v[{124+8*st}:{127+8*st}], v112 offset:{G0*RS+32*st}")
        if st >= 4:
            s2_ = st - 4
            a(f"s_waitcnt lgkmcnt(8)")
            a(f"v_mfma_f32_32x32x16_bf16 v[20:35], v[{120+8*s2_}:{123+8*s2_}], v[{124+8*s2_}:{127+8*s2_}], {'0' if s2_==0 else 'v[20:35]'}")
    for s2_ in range(4, 8):
        a(f"s_waitcnt lgkmcnt({2*(7-s2_)})")
        a(f"v_mfma_f32_32x32x16_bf16 v[20:35], v[{120+8*s2_}:{123+8*s2_}], v[{124+8*s2_}:{127+8*s2_}], v[20:35]")
    for s_ in range(3): a(f"ds_write_b128 v113, v[{20+4*s_}:{23+4*s_}] offset:{4*RS*s_}")
    a(f"""
    s_waitcnt lgkmcnt(0)
    s_barrier
    s_cmp_ge_u32 {sWV}, 6
    s_cbranch_scc1 L_noR
    """)
    for nq in range(4): a(f"ds_read_b128 v[{20+4*nq}:{23+4*nq}], v114 offset:{256*nq}")
    a("s_waitcnt lgkmcnt(2)")
    for i in range(4): a(f"v_add_f32 v{20+i}, v{20+i}, v{24+i}")
    a("s_waitcnt lgkmcnt(0)")
    for i in range(4): a(f"v_add_f32 v{28+i}, v{28+i}, v{32+i}")
    for i in range(4): a(f"v_add_f32 v{20+i}, v{20+i}, v{28+i}")
    a(f"""
    v_cvt_pk_bf16_f32 v20, v20, v21
    v_cvt_pk_bf16_f32 v22, v22, v23
    ds_write_b16 v115, v20
    ds_write_b16_d16_hi v116, v20
    ds_write_b16 v117, v22
    ds_write_b16_d16_hi v118, v22
    s_waitcnt lgkmcnt(0)
    L_noR:
    s_barrier
    """)
    for i in range(7): a(f"ds_read_u16 v{20+i}, v{100+i}")
    a(f"""
    ds_read_u16 v27, v108
    s_waitcnt lgkmcnt(4)
    v_lshl_or_b32 v28, v21, 16, v20
    v_lshl_or_b32 v29, v23, 16, v22
    v_lshl_or_b32 v30, v22, 16, v21
    v_lshl_or_b32 v32, v23, 16, v22
    ds_write_b64 v107, v[28:29]
    s_waitcnt lgkmcnt(2)
    v_lshl_or_b32 v31, v24, 16, v23
    v_lshl_or_b32 v33, v25, 16, v24
    v_lshl_or_b32 v34, v24, 16, v23
    v_lshl_or_b32 v35, v26, 16, v25
    ds_write_b64 v107, v[30:31] offset:{TCS}
    ds_write_b64 v107, v[32:33] offset:{2*TCS}
    ds_write_b64 v107, v[34:35] offset:{3*TCS}
    s_waitcnt lgkmcnt(4)
    ds_write_b16 v109, v27
    v_lshrrev_b32 v52, 1, v0
    v_and_b32 v53, 1, v0
    v_mul_u32_u24 v50, 7168, v52
    v_lshl_add_u32 v50, v53, 4, v50
    s_lshl_b32 {sT0}, {sPR}, 5
    v_add_u32 v50, {sT0}, v50
    v_mul_u32_u24 v51, {US}, v53
    v_lshl_add_u32 v51, v52, 4, v51
    v_add_u32 v51, {U+480}, v51
    s_waitcnt lgkmcnt(0)
    s_barrier
    """)
    stamp(4)
    a(f"global_load_dwordx4 v[20:23], v50, {XNB} sc1")
    AF = 120
    def aload(m):
        a(f"ds_read_b64 v[{AF+4*m}:{AF+4*m+1}], v110 offset:{64*(32-m)}\nds_read_b64 v[{AF+4*m+2}:{AF+4*m+3}], v110 offset:{64*(32-m)+8}")
    for m in range(16): aload(m)
    a(f"s_cmp_eq_u32 {sQ}, 0\ns_cbranch_scc1 L_aq0")
    for m in range(16, 33): aload(m)
    a("s_branch L_adone\nL_aq0:")
    a(f"""
    s_mul_i32 {sT0}, {sCH}, {KCS}
    s_add_u32 {sT0}, {sT0}, {KC + 1024 + 4*(64-63-3)}
    v_lshlrev_b32 v52, 2, v3
    v_sub_u32 v52, v2, v52
    v_lshl_add_u32 v53, v52, 2, {sT0}
    """)
    for mu in range(4):
        a(f"ds_read2_b32 v[{184+4*mu}:{185+4*mu}], v53 offset0:{16*mu+3} offset1:{16*mu+2}")
        a(f"ds_read2_b32 v[{186+4*mu}:{187+4*mu}], v53 offset0:{16*mu+1} offset1:{16*mu}")
    a(f"""
    v_lshlrev_b32 v54, 3, v3
    v_sub_u32 v54, v2, v54
    v_mov_b32 v55, 0x3f80
    v_mov_b32 v56, 0x3f800000
    """)
    for dw in range(4):
        for (dst, lo, n) in ((200 + dw, -4, 9), (204 + dw, 5, 7)):
            a(f"""
            v_add_u32 v57, {12 - 2*dw - lo}, v54
            v_add_u32 v58, {12 - 2*dw - 1 - lo}, v54
            v_cmp_gt_u32 vcc, {n}, v57
            v_cmp_gt_u32 s[62:63], {n}, v58
            v_cndmask_b32 v57, 0, v55, vcc
            v_cndmask_b32 v58, 0, v56, s[62:63]
            v_or_b32 v{dst}, v57, v58
            """)
    a("s_waitcnt lgkmcnt(0)")
    for r in range(4):
        a(f"v_cmp_le_i32 vcc, {r}, v52\nv_cndmask_b32 v{184+r}, 0, v{184+r}, vcc")
    a(f"""
    L_adone:
    s_mov_b32 {sCNT}, 0
    s_mov_b32 {sT0}, {TAGM}
    L_poll1:
    s_waitcnt vmcnt(0)
    v_xor_b32 v24, s{sMSK}, v20
    v_bitop3_b32 v24, v24, v21, s{sMSK+1} bitop3:0xf6
    v_bitop3_b32 v24, v24, v22, s{sMSK+2} bitop3:0xf6
    v_bitop3_b32 v24, v24, v23, s{sMSK+3} bitop3:0xf6
    v_and_b32 v24, {sT0}, v24
    v_cmp_ne_u32 vcc, 0, v24
    s_add_u32 {sCNT}, {sCNT}, 1
    s_cbranch_vccz L_poll1_done
    s_cmp_ge_u32 {sCNT}, {SPIN}
    s_cbranch_scc1 L_poll1_done
    s_mov_b64 exec, vcc
    global_load_dwordx4 v[20:23], v50, {XNB} sc1
    s_branch L_poll1
    L_poll1_done:
    s_mov_b64 exec, -1
    """)
    for i in range(4): a(f"v_add_u32 v{20+i}, s{sDEC+i}, v{20+i}")
    a(f"""
    ds_write_b128 v51, v[20:23]
    s_waitcnt lgkmcnt(0)
    s_barrier
    """)
    stamp(5)
    NB = 6; BF = 60
    UP = "v[20:23]"; LO = "v[24:27]"
    def bload(mp): a(f"ds_read_b128 v[{BF+4*(mp%NB)}:{BF+4*(mp%NB)+3}], v111 offset:{64*(40-mp)}")
    for mp in range(NB - 1): bload(mp)
    a(f"""
    s_or_b32 {sT0}, s2, {sWV}
    s_cmp_lg_u32 {sT0}, 0
    s_cbranch_scc1 L_noE
    v_not_b32 v28, s36
    v_not_b32 v29, s37
    v_not_b32 v30, s38
    v_not_b32 v31, s39
    v_mov_b32 v32, {WS_E}
    s_mov_b64 exec, 1
    global_store_dwordx4 v32, v[28:31], {WS} sc1
    s_mov_b64 exec, -1
    L_noE:
    """)
    for mp in range(41):
        if mp == 16: a(f"s_cmp_eq_u32 {sQ}, 0\ns_cbranch_scc1 L_seg3")
        if mp == 32: a(f"s_cmp_eq_u32 {sQ}, 1\ns_cbranch_scc1 L_convdone")
        if mp + NB - 1 <= 40:
            bload(mp + NB - 1); a(f"s_waitcnt lgkmcnt({NB-1})")
        else: a(f"s_waitcnt lgkmcnt({40-mp})")
        b = f"v[{BF+4*(mp%NB)}:{BF+4*(mp%NB)+3}]"
        if mp <= 32: a(f"v_mfma_f32_16x16x32_bf16 {UP}, v[{AF+4*mp}:{AF+4*mp+3}], {b}, {'0' if mp==0 else UP}")
        if mp >= 8: a(f"v_mfma_f32_16x16x32_bf16 {LO}, v[{AF+4*(mp-8)}:{AF+4*(mp-8)+3}], {b}, {'0' if mp==8 else LO}")
    a("s_branch L_convdone\nL_seg3:")
    o3 = 2048 - 448 + 480 - 56
    a("s_waitcnt lgkmcnt(0)")
    for nu in range(4):
        a(f"ds_read_b64 v[{60+4*nu}:{61+4*nu}], v111 offset:{o3+512*nu}\nds_read_b64 v[{62+4*nu}:{63+4*nu}], v111 offset:{o3+512*nu+8}")
    for nu in range(4):
        a(f"s_waitcnt lgkmcnt({6-2*nu})")
        a(f"v_mfma_f32_16x16x32_bf16 v[{208+8*nu}:{211+8*nu}], v[{60+4*nu}:{63+4*nu}], v[200:203], 0")
        a(f"v_mfma_f32_16x16x32_bf16 v[{212+8*nu}:{215+8*nu}], v[{60+4*nu}:{63+4*nu}], v[204:207], 0")
    for nu in range(4):
        for r in range(4): a(f"v_cvt_pk_bf16_f32 v{76+4*nu+r}, v{208+8*nu+r}, v{212+8*nu+r}")
        for mu in range(4 - nu):
            c = nu + mu
            a(f"v_mfma_f32_16x16x32_bf16 v[{28+4*c}:{31+4*c}], v[{76+4*nu}:{79+4*nu}], v[{184+4*mu}:{187+4*mu}], {'0' if nu==0 else f'v[{28+4*c}:{31+4*c}]'}")
    def yaddr(dst):
        a(f"""
        v_lshlrev_b32 v52, 2, v3
        v_and_b32 v52, 8, v52
        v_or_b32 v52, {sCH}, v52
        v_xor_b32 v52, v2, v52
        v_lshlrev_b32 v52, 4, v52
        v_lshl_add_u32 v{dst}, v3, 8, v52
        """)
    yaddr(53)
    a(f"s_lshl_b32 {sT0}, {sCH}, 12\nv_add_u32 v53, {sT0}, v53")
    for c in range(4): a(f"ds_write_b128 v53, v[{28+4*c}:{31+4*c}] offset:{YP+1024*c}")
    a("L_convdone:")
    yaddr(53)
    a(f"""
    s_lshl_b32 {sT0}, {sCH}, 13
    s_lshl_b32 {sT1}, {sQ}, 11
    s_add_u32 {sT0}, {sT0}, {sT1}
    v_add_u32 v53, {sT0}, v53
    v_and_b32 v54, 1, v1
    v_lshrrev_b32 v55, 2, v1
    v_bfe_u32 v56, v1, 1, 1
    v_lshl_or_b32 v57, v56, 3, v54
    v_xor_b32 v55, v55, v57
    v_lshlrev_b32 v55, 4, v55
    v_lshl_add_u32 v55, v56, 9, v55
    s_lshl_b32 {sT0}, {sWV}, 10
    v_add_u32 v55, {sT0}, v55
    v_lshl_add_u32 v56, v54, 12, v55
    v_lshl_add_u32 v55, v54, 13, v55
    s_nop 1
    ds_write_b128 v53, {UP} offset:{YL+1024}
    ds_write_b128 v53, {LO} offset:{YL}
    s_waitcnt lgkmcnt(0)
    s_barrier
    """)
    stamp(6)
    a(f"""
    ds_read_b128 v[20:23], v55 offset:{YL}
    ds_read_b128 v[24:27], v55 offset:{YL+256}
    s_cmp_lt_u32 {sWV}, 4
    s_cbranch_scc1 L_nopart
    ds_read_b128 v[28:31], v56 offset:{YP-4096}
    ds_read_b128 v[32:35], v56 offset:{YP-4096+256}
    s_waitcnt lgkmcnt(0)
    """)
    for i in range(8): a(f"v_add_f32 v{20+i}, v{20+i}, v{28+i}")
    a("L_nopart:\ns_waitcnt lgkmcnt(0)")
    for i in range(4): a(f"v_cvt_pk_bf16_f32 v{28+i}, v{20+2*i}, v{21+2*i}")
    a(f"global_store_dwordx4 v7, v[28:31], {YB} sc1")
    stamp(7)
    a(f"""
    L_epi:
    s_cmp_eq_u32 {sWV}, 7
    s_cbranch_scc1 L_fin
    v_lshlrev_b32 v50, 1, v0
    global_load_ushort v40, v50, {DSK}
    ds_read_b64_tr_b16 v[60:61], v19
    ds_read_b64_tr_b16 v[62:63], v19 offset:3840
    ds_read_b64_tr_b16 v[64:65], v19 offset:7680
    ds_read_b64_tr_b16 v[66:67], v19 offset:{7680+3840}
    v_lshrrev_b32 v52, 1, v0
    v_and_b32 v53, 1, v0
    v_lshlrev_b32 v52, 13, v52
    v_lshl_add_u32 v52, v53, 4, v52
    s_lshl_b32 {sT0}, {sTB}, 5
    v_add_u32 v52, {sT0}, v52
    v_mov_b32 v53, {Y_IDX}
    s_mul_i32 {sT0}, {sTB}, 7168
    s_add_u32 {sT0}, {sT0}, 3584
    v_add_u32 v50, {sT0}, v50
    s_mov_b32 {sT1}, {BIAS}
    s_waitcnt lgkmcnt(0)
    """)
    for i in range(4):
        a(f"v_add_u32 v{64+i}, {sT1}, v{64+i}\nv_lshlrev_b32 v{70+2*i}, 16, v{60+i}\nv_and_b32 v{71+2*i}, {sHI}, v{60+i}")
    for i in range(4): a(f"v_lshlrev_b32 v{80+2*i}, 16, v{64+i}\nv_and_b32 v{81+2*i}, {sHI}, v{64+i}")
    a("s_waitcnt vmcnt(0)\nv_lshlrev_b32 v40, 16, v40")
    a(f"global_load_dwordx4 v[20:23], v52, {YB} sc1\nglobal_load_dword v24, v53, {YB} sc1")
    for i in range(8): a(f"v_mul_f32 v{90+i}, v40, v{80+i}")
    for i in range(4): a(f"v_cvt_pk_bf16_f32 v{60+i}, v{90+2*i}, v{91+2*i}")
    for i in range(4): a(f"v_lshlrev_b32 v{90+2*i}, 16, v{60+i}\nv_and_b32 v{91+2*i}, {sHI}, v{60+i}")
    a(f"""
    s_mov_b32 {sCNT}, 0
    L_poll2:
    s_waitcnt vmcnt(0)
    v_max3_u32 v25, v20, v21, v22
    v_max3_u32 v25, v25, v23, v24
    v_cmp_eq_u32 vcc, -1, v25
    s_add_u32 {sCNT}, {sCNT}, 1
    s_cbranch_vccz L_poll2_done
    s_cmp_ge_u32 {sCNT}, {SPIN}
    s_cbranch_scc1 L_poll2_done
    s_mov_b64 exec, vcc
    global_load_dwordx4 v[20:23], v52, {YB} sc1
    global_load_dword v24, v53, {YB} sc1
    s_branch L_poll2
    L_poll2_done:
    s_mov_b64 exec, -1
    """)
    stamp(8)
    a(f"v_readfirstlane_b32 {sIDX}, v24")
    for i in range(4): a(f"v_lshlrev_b32 v{28+2*i}, 16, v{20+i}\nv_and_b32 v{29+2*i}, {sHI}, v{20+i}")
    for base in (90, 70):
        for i in range(8): a(f"v_add_f32 v{28+i}, v{28+i}, v{base+i}")
        for i in range(4): a(f"v_cvt_pk_bf16_f32 v{20+i}, v{28+2*i}, v{29+2*i}")
        for i in range(4): a(f"v_lshlrev_b32 v{28+2*i}, 16, v{20+i}\nv_and_b32 v{29+2*i}, {sHI}, v{20+i}")
    for i in range(8): a(f"v_add_f32 v{28+i}, v{28+i}, v{80+i}")
    for i in range(4): a(f"v_cvt_pk_bf16_f32 v{20+i}, v{28+2*i}, v{29+2*i}")
    a(f"s_lshl_b32 {sT0}, {sTB}, 3\ns_sub_u32 {sT0}, {sIDX}, {sT0}")
    for r in range(8):
        a(f"s_cmp_eq_u32 {sT0}, {r}\ns_cbranch_scc1 L_sk{r}")
        a(f"global_store_short{'_d16_hi' if r & 1 else ''} v50, v{20+r//2}, {OUT} offset:{896*(r-4)}")
        a(f"L_sk{r}:")
    a("s_branch L_fin")
    def perms(src, dst):
        for kp in range(4):
            for dw in range(4):
                a(f"v_perm_b32 v{dst+4*(2*dw)+kp}, v{src+4*(2*kp+1)+dw}, v{src+4*(2*kp)+dw}, {sT2}")
                a(f"v_perm_b32 v{dst+4*(2*dw+1)+kp}, v{src+4*(2*kp+1)+dw}, v{src+4*(2*kp)+dw}, {sT3}")
    def gemv(afrag, w, acc, res):
        for e in range(8): a(f"v_mfma_f32_16x16x32_bf16 v[{acc+4*e}:{acc+4*e+3}], v[{afrag}:{afrag+3}], v[{w+4*e}:{w+4*e+3}], 0")
    def fold(acc, res):
        for e in range(4): a(f"v_add_f32_dpp v{res+e}, v{acc+4*e+1}, v{acc+4*e} row_shl:8 row_mask:0xf bank_mask:0x3")
        for e in range(4, 8): a(f"v_add_f32_dpp v{res+e-4}, v{acc+4*e}, v{acc+4*e+1} row_shr:8 row_mask:0xf bank_mask:0xc")
    a(f"""
    L_ffn:
    s_cmp_eq_u32 {sWV}, 7
    s_cbranch_scc1 L_ffn7
    s_cmp_ge_u32 {sFI}, 28
    s_cbranch_scc1 L_spare
    v_lshrrev_b32 v50, 3, v2
    v_lshl_add_u32 v50, v50, 2, v3
    v_and_b32 v51, 7, v2
    v_lshlrev_b32 v51, 4, v51
    s_movk_i32 {sT0}, {8*3584}
    v_mad_u32_u24 v52, v50, {sT0}, v51
    s_mul_i32 {sT0}, {sWV}, {64*3584}
    s_lshl_b32 {sT1}, {sFI}, 7
    s_add_u32 {sT0}, {sT0}, {sT1}
    s_add_u32 {sT0}, {sT0}, 3584
    v_add_u32 v52, {sT0}, v52
    v_add_u32 v53, {3*3584}, v52
    v_add_u32 v54, {6*3584}, v52
    s_movk_i32 {sT0}, {8*896}
    v_mad_u32_u24 v55, v50, {sT0}, v51
    s_mul_i32 {sT0}, {sFI}, {64*896}
    s_lshl_b32 {sT1}, {sWV}, 7
    s_add_u32 {sT0}, {sT0}, {sT1}
    s_add_u32 {sT0}, {sT0}, 3584
    v_add_u32 v55, {sT0}, v55
    """)
    for (base, ptr) in ((60, WG_), (92, WU)):
        for e in range(8): a(f"global_load_dwordx4 v[{base+4*e}:{base+4*e+3}], v{52+e//3}, {ptr} offset:{3584*(e%3-1)}")
    for e in range(8): a(f"global_load_dwordx4 v[{124+4*e}:{127+4*e}], v55, {WD} offset:{896*(e-4)}")
    a(f"""
    s_mov_b32 {sT2}, 0x05040100
    s_mov_b32 {sT3}, 0x07060302
    v_and_b32 v50, 1, v2
    v_lshlrev_b32 v50, 6, v50
    v_lshl_add_u32 v50, v3, 4, v50
    s_lshl_b32 {sT0}, {sWV}, 7
    v_add_u32 v50, {sT0}, v50
    v_lshrrev_b32 v56, 3, v2
    v_lshlrev_b32 v56, 4, v56
    v_lshl_add_u32 v56, v51, 1, v56
    s_lshl_b32 {sT1}, {sWV}, 9
    v_add_u32 v56, {sT1}, v56
    v_lshlrev_b32 v57, 2, v1
    v_lshl_add_u32 v58, v1, 1, {sT0}
    s_lshl_b32 {sT0}, s2, 13
    s_lshl_b32 {sT1}, {sWV}, 8
    s_add_u32 {sT0}, {sT0}, {sT1}
    v_add_u32 v59, {sT0}, v4
    s_waitcnt vmcnt(16)
    """)
    perms(60, 156); a("s_waitcnt vmcnt(8)"); perms(92, 188); a("s_waitcnt vmcnt(0)"); perms(124, 220)
    stamp(3)
    a(f"""
    s_barrier
    ds_read_b128 v[20:23], v50 offset:{FXN}
    s_waitcnt lgkmcnt(0)
    """)
    stamp(5)
    gemv(20, 156, 60, 0); gemv(20, 188, 92, 0)
    fold(60, 24); fold(92, 28)
    a(f"""
    s_mov_b64 exec, 0xffff
    ds_write_b128 v56, v[24:27] offset:{FGP}
    ds_write_b128 v56, v[28:31] offset:{FGP+256}
    s_mov_b64 exec, -1
    s_waitcnt lgkmcnt(0)
    s_barrier
    """)
    for p in range(7): a(f"ds_read2st64_b32 v[{24+2*p}:{25+2*p}], v57 offset0:{FGP//256+2*p} offset1:{FGP//256+2*p+1}")
    a(f"""
    s_waitcnt lgkmcnt(0)
    v_add_f32 v24, v24, v26
    v_add_f32 v25, v25, v27
    v_add_f32 v28, v28, v30
    v_add_f32 v29, v29, v31
    v_add_f32 v32, v32, v34
    v_add_f32 v33, v33, v35
    v_add_f32 v24, v24, v28
    v_add_f32 v25, v25, v29
    v_add_f32 v32, v32, v36
    v_add_f32 v33, v33, v37
    v_add_f32 v24, v24, v32
    v_add_f32 v25, v25, v33
    v_cvt_pk_bf16_f32 v24, v24, v25
    v_lshlrev_b32 v26, 16, v24
    v_and_b32 v25, {sHI}, v24
    v_mul_f32 v27, {hex(f2u(-1.4426950408889634))}, v26
    v_exp_f32 v27, v27
    v_add_f32 v27, 1.0, v27
    v_rcp_f32 v27, v27
    v_mul_f32 v26, v26, v27
    v_cvt_pk_bf16_f32 v26, 0, v26
    v_mul_f32 v26, v26, v25
    v_cvt_pk_bf16_f32 v26, v26, v26
    ds_write_b16 v58, v26 offset:{FH}
    ds_read_b128 v[20:23], v50 offset:{FH}
    s_waitcnt lgkmcnt(0)
    """)
    gemv(20, 220, 60, 0); fold(60, 24)
    a(f"""
    s_mov_b64 exec, 0xffff
    global_store_dwordx4 v59, v[24:27], {YB} sc1
    s_mov_b64 exec, -1
    """)
    stamp(7)
    a(f"""
    s_branch L_epi
    L_spare:
    s_barrier
    s_branch L_epi
    L_ffn7:
    v_add_u32 v50, {WS_CAND}, v4
    s_not_b32 {sT3}, s39
    s_mov_b32 {sCNT}, 0
    s_waitcnt vmcnt(0)
    L_poll3:
    """)
    for i in range(4): a(f"global_load_dwordx4 v[{20+4*i}:{23+4*i}], v50, {WS} offset:{1024*i} sc1")
    a(f"""
    s_waitcnt vmcnt(0)
    v_xor_b32 v51, {sT3}, v23
    v_bitop3_b32 v51, v51, v27, {sT3} bitop3:0xf6
    v_bitop3_b32 v51, v51, v31, {sT3} bitop3:0xf6
    v_bitop3_b32 v51, v51, v35, {sT3} bitop3:0xf6
    v_cmp_ne_u32 vcc, 0, v51
    s_add_u32 {sCNT}, {sCNT}, 1
    s_cmp_ge_u32 {sCNT}, {SPIN}
    s_cbranch_scc1 L_poll3_done
    s_mov_b64 exec, vcc
    s_cbranch_execnz L_poll3
    L_poll3_done:
    s_mov_b64 exec, -1
    """)
    stamp(3)
    a(f"""
    s_cmp_ge_u32 {sFI}, 28
    s_cbranch_scc1 L_spare7
    v_max3_f32 v51, v20, v24, v28
    v_max_f32 v51, v51, v32
    v_cmp_eq_u32 vcc, v51, v24
    v_max_f32_dpp v52, v51, v51 row_ror:8 row_mask:0xf bank_mask:0xf
    v_cmp_eq_u32 s[62:63], v51, v28
    v_cndmask_b32 v21, v21, v25, vcc
    v_max_f32_dpp v52, v52, v52 row_ror:4 row_mask:0xf bank_mask:0xf
    v_cndmask_b32 v22, v22, v26, vcc
    v_cmp_eq_u32 vcc, v51, v32
    v_max_f32_dpp v52, v52, v52 row_ror:2 row_mask:0xf bank_mask:0xf
    v_cndmask_b32 v21, v21, v29, s[62:63]
    v_cndmask_b32 v22, v22, v30, s[62:63]
    v_max_f32_dpp v52, v52, v52 row_ror:1 row_mask:0xf bank_mask:0xf
    v_cndmask_b32 v21, v21, v33, vcc
    v_cndmask_b32 v22, v22, v34, vcc
    v_max_f32_dpp v52, v52, v52 row_bcast:15 row_mask:0xa bank_mask:0xf
    v_max_f32_dpp v52, v52, v52 row_bcast:31 row_mask:0xc bank_mask:0xf
    v_readlane_b32 {sP}, v52, 63
    s_and_b32 {sIDX}, {sP}, 0x7ff
    s_mul_i32 {sT0}, {sIDX}, 896
    v_add_u32 v53, {sT0}, v4
    s_mov_b32 exec_hi, 0x00ffffff
    global_load_dwordx4 v[10:13], v53, {X}
    s_mov_b32 exec_hi, -1
    v_cmp_eq_u32 vcc, {sP}, v51
    s_ff1_i32_b64 {sT1}, vcc
    s_and_b32 {sT1}, {sT1}, 63
    v_readlane_b32 {sT2}, v21, {sT1}
    v_readlane_b32 {sT3}, v22, {sT1}
    s_cmp_lg_u32 {sFI}, 0
    s_cbranch_scc1 L_noidx
    v_mov_b32 v54, {Y_IDX}
    v_mov_b32 v55, {sIDX}
    s_mov_b64 exec, 1
    global_store_dword v54, v55, {YB} sc1
    s_mov_b64 exec, -1
    s_waitcnt vmcnt(1)
    s_branch L_idx2
    L_noidx:
    s_waitcnt vmcnt(0)
    L_idx2:
    """)
    stamp(4)
    for i in range(4): a(f"v_lshlrev_b32 v{20+2*i}, 16, v{10+i}\nv_and_b32 v{21+2*i}, {sHI}, v{10+i}")
    for i in range(8): a(f"v_subrev_f32 v{20+i}, {sT2}, v{20+i}")
    for i in range(4): a(f"v_cvt_pk_bf16_f32 v{28+i}, v{20+2*i}, v{21+2*i}")
    for i in range(4): a(f"v_lshlrev_b32 v{20+2*i}, 16, v{28+i}\nv_and_b32 v{21+2*i}, {sHI}, v{28+i}")
    for i in range(8): a(f"v_mul_f32 v{20+i}, {sT3}, v{20+i}")
    for i in range(4): a(f"v_cvt_pk_bf16_f32 v{28+i}, v{20+2*i}, v{21+2*i}")
    a(f"""
    ds_write_b128 v4, v[28:31] offset:{FXN}
    ds_write_b128 v4, v[10:13] offset:{FXR}
    s_waitcnt lgkmcnt(0)
    s_barrier
    s_and_b32 {sT1}, {sFI}, 3
    s_lshl_b32 {sT1}, {sT1}, 2
    v_lshrrev_b32 v50, 2, v2
    v_add_u32 v50, {sT1}, v50
    v_and_b32 v51, 7, v50
    v_lshrrev_b32 v50, 3, v50
    v_lshlrev_b32 v51, 3, v51
    v_lshl_add_u32 v50, v50, 2, v51
    v_and_b32 v51, 3, v2
    s_lshr_b32 {sT1}, {sFI}, 2
    s_lshl_b32 {sT1}, {sT1}, 6
    v_add3_u32 v50, v50, v51, {sT1}
    v_lshlrev_b32 v51, 1, v50
    global_load_ushort v40, v51, {DSK}
    ds_read_u16 v41, v51 offset:{FXN}
    ds_read_u16 v42, v51 offset:{FXR}
    v_add_u32 v53, {sT0}, v51
    v_lshrrev_b32 v52, 1, v50
    v_and_b32 v50, 1, v50
    v_lshlrev_b32 v52, 13, v52
    v_lshl_add_u32 v52, v50, 4, v52
    s_lshr_b32 {sT1}, {sIDX}, 3
    s_lshl_b32 {sT1}, {sT1}, 5
    s_and_b32 {sT2}, {sIDX}, 6
    s_lshl_b32 {sT2}, {sT2}, 1
    s_add_u32 {sT1}, {sT1}, {sT2}
    v_add_u32 v52, {sT1}, v52
    v_lshlrev_b32 v54, 13, v3
    v_lshl_add_u32 v54, v2, 2, v54
    s_lshl_b32 {sT1}, {sFI}, 6
    s_add_u32 {sT1}, {sT1}, {Y_PART}
    v_add_u32 v54, {sT1}, v54
    """)
    for p in range(1, 7): a(f"v_add_u32 v{54+p}, {32768*p}, v54")
    a(f"""
    s_and_b32 {sT1}, {sP}, {sHI}
    v_mov_b32 v43, {sT1}
    v_mul_f32 v43, {hex(f2u(-1.4426950408889634))}, v43
    v_exp_f32 v43, v43
    v_add_f32 v43, 1.0, v43
    v_rcp_f32 v43, v43
    v_cvt_pk_bf16_f32 v43, 0, v43
    s_waitcnt vmcnt(0) lgkmcnt(0)
    v_lshlrev_b32 v40, 16, v40
    v_lshlrev_b32 v41, 16, v41
    v_lshlrev_b32 v42, 16, v42
    v_mul_f32 v40, v40, v41
    v_cvt_pk_bf16_f32 v40, 0, v40
    s_barrier
    s_mov_b32 {sCNT}, 0
    L_poll4:
    """)
    for p in range(7): a(f"global_load_dword v{20+p}, v{54+p}, {YB} sc1")
    a(f"""
    global_load_dword v27, v52, {YB} sc1
    s_waitcnt vmcnt(0)
    v_max3_u32 v28, v20, v21, v22
    v_max3_u32 v29, v23, v24, v25
    v_max3_u32 v28, v28, v26, v27
    v_max_u32 v28, v28, v29
    v_cmp_eq_u32 vcc, -1, v28
    s_add_u32 {sCNT}, {sCNT}, 1
    s_cmp_ge_u32 {sCNT}, {SPIN}
    s_cbranch_scc1 L_poll4_done
    s_mov_b64 exec, vcc
    s_cbranch_execnz L_poll4
    L_poll4_done:
    s_mov_b64 exec, -1
    """)
    stamp(8)
    a(f"""
    v_add_f32 v20, v20, v21
    v_add_f32 v22, v22, v23
    v_add_f32 v24, v24, v25
    v_add_f32 v20, v20, v26
    v_add_f32 v22, v22, v24
    s_bitcmp1_b32 {sIDX}, 0
    s_cselect_b32 {sT1}, 0, 16
    v_add_f32 v20, v20, v22
    v_lshlrev_b32 v27, {sT1}, v27
    v_mov_b32 v21, v20
    v_and_b32 v27, {sHI}, v27
    v_permlane32_swap_b32 v20, v21
    v_add_f32 v20, v20, v21
    v_add_f32 v27, v27, v40
    v_mov_b32 v21, v20
    v_cvt_pk_bf16_f32 v27, 0, v27
    v_permlane16_swap_b32 v20, v21
    v_add_f32 v20, v20, v21
    v_add_f32 v27, v27, v42
    v_cvt_pk_bf16_f32 v20, 0, v20
    v_cvt_pk_bf16_f32 v27, 0, v27
    v_mul_f32 v20, v20, v43
    v_cvt_pk_bf16_f32 v20, 0, v20
    v_add_f32 v20, v20, v41
    v_cvt_pk_bf16_f32 v20, 0, v20
    v_add_f32 v20, v20, v27
    v_cvt_pk_bf16_f32 v20, v20, v20
    s_mov_b64 exec, 0xffff
    global_store_short v53, v20, {OUT}
    s_mov_b64 exec, -1
    s_branch L_fin
    L_spare7:
    s_barrier
    L_fin:
    """)
    if diag:
        a("s_waitcnt vmcnt(0)")
        stamp(9)
        a(f"""
        s_lshl_b32 {sT0}, s2, 3
        s_add_u32 {sT0}, {sT0}, {sWV}
        s_lshl_b32 {sT0}, {sT0}, 6
        s_add_u32 {sT0}, {sT0}, {WS_STAMP}
        v_mov_b32 v50, {sT0}
        """)
        for i in range(10): a(f"v_mov_b32 v{20+i}, s{64+2*i}")
        a(f"v_mov_b32 v30, {sCNT}\nv_mov_b32 v31, 0\ns_mov_b64 exec, 1")
        for i in range(3): a(f"global_store_dwordx4 v50, v[{20+4*i}:{23+4*i}], {WS} offset:{16*i}")
    a("L_end:\ns_endpgm\nL_code_end:")
    rep = []
    body = hz.fix(a.text(), rep)
    if opt.get("verbose"):
        for r in rep: print("nop", r)
    return single_file(body, 256, 512, LDS_BYTES, 256, sgpr=96)

if __name__ == "__main__":
    open("k_diag.s", "w").write(gen({"diag": True}))
    open("k.s", "w").write(gen({"verbose": "-v" in sys.argv}))
```

```python
import sys, struct
from asmlib import *
import hz

def f2u(x): return struct.unpack("<I", struct.pack("<f", x))[0]

WS_E    = 0x0
WS_CAND = 0x1000
WS_XN   = 0x100000
WS_Y    = 0x300000
Y_PART  = 224 * 8192
Y_IDX   = Y_PART + 4096
WS_STAMP= 0x800000
RS    = 1040
CHS   = 53 * RS
LNX   = 110336
LNN   = LNX + 7680
CANDL = LNN + 7680
ZB    = CANDL + 128
KC    = ZB + 16
KCS   = 1568
TT    = 129024
TCS   = 2240
TTS   = 4 * TCS
U     = TT + 2 * TTS
US    = 4672
LDS_BYTES = ZB + 32768
YL    = 0
YP    = 16384
FXN = 0; FXR = 1024; FGP = 2048; FH = 8192
TAGM = 0x60006000
BIAS = (68 << 7) * 0x10001
SPIN = 200000

def gen(opt):
    diag = opt.get("diag", False)
    a = Asm()
    nst = [0]
    def stamp(i):
        if diag: a(f"s_memrealtime s[{64+2*i}:{65+2*i}]\ns_waitcnt lgkmcnt(0)")
    sWV="s3"; sTB="s6"; sPR="s7"; sCH="s40"; sQ="s41"; sHI="s42"; sP="s43"; sT0="s44"; sT1="s45"; sT2="s46"; sT3="s47"
    sLD="s48"; sIDX="s49"; sCNT="s50"; sFI="s51"; sDEC=52
    sMSK=56
    X="s[8:9]"; LOGA="s[10:11]"; AIM="s[12:13]"; CRE="s[14:15]"; CIM="s[16:17]"; LDT="s[18:19]"; DSK="s[20:21]"
    WR="s[24:25]"; WG_="s[26:27]"; WU="s[28:29]"; WD="s[30:31]"; OUT="s[32:33]"; WS="s[34:35]"
    YB="s[22:23]"; XNB="s[60:61]"
    if diag: a("s_memrealtime s[64:65]")
    a(f"""
    s_cmp_ge_u32 s2, 256
    s_cbranch_scc1 L_end
    s_load_dwordx16 s[8:23], s[0:1], 0
    s_load_dwordx8 s[24:31], s[0:1], 64
    s_load_dwordx2 {OUT}, s[0:1], 96
    s_load_dwordx2 {WS}, s[0:1], 112
    s_getpc_b64 s[4:5]
    L_pc:
    v_lshrrev_b32 v2, 6, v0
    v_lshrrev_b32 v3, 2, v0
    v_readfirstlane_b32 {sWV}, v2
    v_lshlrev_b32 v3, 7, v3
    v_min_u32 v3, L_code_end-L_pc-4, v3
    global_load_dword v9, v3, s[4:5]
    v_and_b32 v1, 63, v0
    s_and_b32 {sT0}, s2, 7
    s_lshr_b32 {sT1}, s2, 3
    s_lshl_b32 {sTB}, {sT0}, 5
    s_add_u32 {sTB}, {sTB}, {sT1}
    s_mul_i32 {sPR}, {sT0}, 28
    s_add_u32 {sPR}, {sPR}, {sT1}
    s_lshl_b32 {sT2}, {sTB}, 3
    s_add_u32 {sT2}, {sT2}, {sWV}
    s_mul_i32 {sT3}, {sT2}, 896
    v_lshlrev_b32 v4, 4, v1
    v_add_u32 v5, {sT3}, v4
    s_bfe_u32 {sCH}, {sWV}, 0x10001
    s_and_b32 {sQ}, {sWV}, 1
    s_cmp_ge_u32 {sWV}, 4
    s_cselect_b32 {sT0}, 3, 0
    s_xor_b32 {sQ}, {sQ}, {sT0}
    s_sub_u32 {sFI}, s2, 224
    v_mov_b32 v36, -1
    v_mov_b32 v37, -1
    v_mov_b32 v38, -1
    v_mov_b32 v39, -1
    v_lshlrev_b32 v6, 4, v0
    s_cmp_ge_u32 s2, 224
    s_cselect_b32 {sT0}, s2, {sPR}
    s_lshl_b32 {sT0}, {sT0}, 13
    v_add_u32 v7, {sT0}, v6
    s_mov_b32 exec_hi, 0x00ffffff
    s_waitcnt lgkmcnt(0)
    global_load_dwordx4 v[10:13], v5, {X}
    s_mov_b32 exec_hi, -1
    s_load_dwordx4 s[36:39], {WS}, {WS_E}
    s_add_u32 s22, s34, {WS_Y}
    s_addc_u32 s23, s35, 0
    s_add_u32 s60, s34, {WS_XN}
    s_addc_u32 s61, s35, 0
    global_store_dwordx4 v7, v[36:39], {YB} sc1
    s_mov_b32 exec_hi, 0x00ffffff
    global_load_dwordx4 v[14:17], v4, {WR}
    s_mov_b32 exec_hi, -1
    s_cmp_ge_u32 s2, 224
    s_cbranch_scc1 L_pro_ffn
    """)
    a(f"""
    s_lshl_b32 {sT0}, {sPR}, 1
    s_add_u32 {sT0}, {sT0}, {sCH}
    s_lshl_b32 {sT0}, {sT0}, 9
    s_lshl_b32 {sT1}, {sQ}, 7
    s_add_u32 {sT0}, {sT0}, {sT1}
    v_lshl_add_u32 v8, v1, 1, {sT0}
    global_load_ushort v40, v8, {LOGA}
    global_load_ushort v41, v8, {AIM}
    global_load_ushort v42, v8, {CRE}
    global_load_ushort v43, v8, {CIM}
    s_lshl_b32 {sT0}, {sPR}, 2
    s_load_dword {sLD}, {LDT}, {sT0}
    """)
    a(f"""
    v_mov_b32 v44, 0
    v_mov_b32 v45, 0
    v_mov_b32 v46, 0
    v_mov_b32 v47, 0
    v_add_u32 v48, {ZB}, v6
    ds_write_b128 v48, v[44:47]
    ds_write_b128 v48, v[44:47] offset:8192
    ds_write_b128 v48, v[44:47] offset:16384
    ds_write_b128 v48, v[44:47] offset:24576
    """)
    a(f"""
    s_lshl_b32 {sT0}, {sQ}, 8
    s_sub_u32 {sT0}, 1023, {sT0}
    v_lshlrev_b32 v50, 2, v1
    v_sub_u32 v50, {sT0}, v50
    s_mul_i32 {sT1}, {sCH}, {KCS}
    s_add_u32 {sT1}, {sT1}, {KC}
    s_movk_i32 {sT2}, 0x4280
    s_movk_i32 {sT3}, 128
    """)
    for i in range(7):
        a(f"""
        v_subrev_u32 v51, {i}, v50
        v_max_i32 v52, 0, v51
        v_cvt_f32_u32 v52, v52
        v_min_i32 v51, {sT3}, v51
        v_cvt_pk_bf16_f32 v52, v52, 0
        v_subrev_u32 v52, {sT2}, v52
        v_max_i32 v51, v51, v52
        v_lshl_add_u32 v{100+i}, v51, 1, {sT1}
        """)
    a(f"""
    s_mul_i32 {sT2}, {sCH}, {TTS}
    s_add_u32 {sT2}, {sT2}, {TT}
    s_lshl_b32 {sT3}, {sQ}, 9
    s_add_u32 {sT3}, {sT3}, {sT2}
    s_add_u32 {sT3}, {sT3}, 64
    v_lshl_add_u32 v107, v1, 3, {sT3}
    v_and_b32 v2, 15, v1
    v_lshrrev_b32 v3, 4, v1
    v_add_u32 v51, v2, v3
    v_mov_b32 v52, 511
    v_cmp_gt_u32 vcc, 18, v51
    v_addc_co_u32 v52, vcc, 0, v52, vcc
    v_cmp_gt_u32 vcc, 11, v51
    v_addc_co_u32 v52, vcc, 0, v52, vcc
    v_cmp_le_u32 vcc, 4, v51
    v_cndmask_b32 v52, -1, v52, vcc
    v_lshl_add_u32 v108, v52, 1, {sT1}
    v_mul_u32_u24 v51, {TCS}, v3
    v_lshl_add_u32 v51, v2, 1, v51
    v_add3_u32 v109, v51, {sT2}, 32
    v_sub_u32 v51, 15, v2
    v_and_b32 v52, 3, v51
    v_sub_u32 v51, v51, v52
    v_lshl_add_u32 v51, v3, 3, v51
    v_mul_u32_u24 v52, {TCS}, v52
    v_lshl_add_u32 v51, v51, 1, v52
    v_add_u32 v110, {sT2}, v51
    s_mul_i32 {sT0}, {sCH}, {US}
    s_lshl_b32 {sT3}, {sQ}, 10
    s_add_u32 {sT0}, {sT0}, {sT3}
    s_add_u32 {sT0}, {sT0}, {U + 448 - 2048}
    v_lshlrev_b32 v51, 5, v2
    v_lshl_add_u32 v51, v3, 4, v51
    v_add_u32 v111, {sT0}, v51
    s_mul_i32 {sT0}, {sCH}, {CHS}
    s_lshl_b32 {sT3}, {sQ}, 8
    s_add_u32 {sT0}, {sT0}, {sT3}
    s_mov_b32 m0, {sT0}
    v_and_b32 v51, 31, v1
    v_lshrrev_b32 v52, 5, v1
    v_mul_u32_u24 v53, {RS}, v51
    v_lshl_add_u32 v53, v52, 4, v53
    v_add_u32 v112, {sT0}, v53
    v_mul_u32_u24 v53, {RS}, v3
    v_lshl_add_u32 v53, v2, 4, v53
    v_add_u32 v113, {sT0}, v53
    s_and_b32 {sT0}, {sWV}, 1
    s_lshr_b32 {sT3}, {sWV}, 1
    s_mul_i32 {sT1}, {sT0}, {CHS}
    s_mul_i32 {sT2}, {sT3}, {4*RS}
    s_add_u32 {sT1}, {sT1}, {sT2}
    v_add_u32 v114, {sT1}, v53
    s_mul_i32 {sT0}, {sT0}, {KCS}
    s_lshl_b32 {sT1}, {sT3}, 9
    s_add_u32 {sT0}, {sT0}, {sT1}
    s_add_u32 {sT0}, {sT0}, {KC}
    s_cmp_eq_u32 {sT3}, 0
    s_cselect_b32 {sT1}, 3, 8
    v_lshlrev_b32 v53, {sT1}, v52
    s_cselect_b32 {sT1}, 4, 1
    s_cselect_b32 {sT2}, 4, 128
    s_cmp_eq_u32 {sT3}, 1
    s_cselect_b32 {sT1}, 3, {sT1}
    s_cselect_b32 {sP}, 1, 0
    v_and_b32 v54, {sP}, v52
    v_sub_u32 v54, {sT1}, v54
    v_lshlrev_b32 v54, v54, v51
    v_add3_u32 v115, v53, v54, {sT0}
    s_cmp_eq_u32 {sT3}, 2
    s_cselect_b32 {sT0}, 64, 2
    s_cselect_b32 {sT1}, 128, 4
    v_mov_b32 v53, {sT1}
    v_mov_b32 v54, {sT2}
    v_cmp_eq_u32 vcc, 0, v52
    v_cndmask_b32 v53, v54, v53, vcc
    v_add_u32 v116, {sT0}, v115
    v_add_u32 v117, v53, v115
    v_add_u32 v118, {sT0}, v117
    s_branch L_ln
    """)
    a(f"""
    L_pro_ffn:
    global_load_dword v40, v3, s[4:5]
    global_load_dword v41, v3, s[4:5]
    global_load_dword v42, v3, s[4:5]
    global_load_dword v43, v3, s[4:5]
    v_and_b32 v2, 15, v1
    v_lshrrev_b32 v3, 4, v1
    """)
    a(f"""
    L_ln:
    s_mov_b32 {sHI}, 0xffff0000
    s_mul_i32 {sT0}, {sWV}, 960
    s_add_u32 {sT0}, {sT0}, {LNX}
    v_add_u32 v18, {sT0}, v4
    v_mov_b32 v44, 0
    v_mov_b32 v45, 0
    v_mov_b32 v46, 0
    v_and_b32 v50, 0x1f0, v0
    v_and_b32 v51, 3, v0
    v_lshlrev_b32 v50, 1, v50
    v_lshl_add_u32 v50, v51, 3, v50
    v_bfe_u32 v51, v0, 2, 2
    v_mul_u32_u24 v51, 960, v51
    v_add_u32 v50, v50, v51
    v_add_u32 v19, {LNX}, v50
    s_mul_i32 {sT0}, {sTB}, 7168
    v_add_u32 v49, {sT0}, v6
    s_waitcnt lgkmcnt(0)
    """)
    for i in range(4):
        a(f"s_andn2_b32 s{sMSK+i}, {TAGM}, s{36+i}\ns_sub_u32 s{sDEC+i}, {BIAS}, s{sMSK+i}")
    a("s_mov_b32 exec_hi, 0x00ffffff\ns_waitcnt vmcnt(6)")
    stamp(1)
    for i in range(4):
        a(f"v_lshlrev_b32 v{20+2*i}, 16, v{10+i}\nv_and_b32 v{21+2*i}, {sHI}, v{10+i}")
    a(f"v_readfirstlane_b32 {sP}, v20\nds_write_b128 v18, v[10:13]")
    for i in range(8): a(f"v_subrev_f32 v{28+i}, {sP}, v{20+i}")
    a(f"""
    v_add_f32 v44, v28, v29
    v_mul_f32 v45, v28, v28
    v_add_f32 v50, v30, v31
    v_mul_f32 v51, v29, v29
    v_add_f32 v52, v32, v33
    v_fmac_f32 v45, v30, v30
    v_add_f32 v53, v34, v35
    v_fmac_f32 v51, v31, v31
    v_add_f32 v44, v44, v50
    v_fmac_f32 v45, v32, v32
    v_add_f32 v52, v52, v53
    v_fmac_f32 v51, v33, v33
    v_fmac_f32 v45, v34, v34
    v_fmac_f32 v51, v35, v35
    v_add_f32 v44, v44, v52
    v_add_f32 v45, v45, v51
    s_mov_b32 exec_hi, -1
    v_permlane32_swap_b32 v44, v45
    v_add_f32 v44, v44, v45
    v_add_f32_dpp v44, v44, v44 row_ror:8 row_mask:0xf bank_mask:0xf
    v_add_f32_dpp v44, v44, v44 row_ror:4 row_mask:0xf bank_mask:0xf
    v_add_f32_dpp v44, v44, v44 row_ror:2 row_mask:0xf bank_mask:0xf
    v_add_f32_dpp v44, v44, v44 row_ror:1 row_mask:0xf bank_mask:0xf
    v_add_f32_dpp v44, v44, v44 row_bcast:15 row_mask:0xa bank_mask:0xf
    v_mul_f32 v44, {hex(f2u(1.0/448))}, v44
    v_readlane_b32 {sT0}, v44, 16
    v_readlane_b32 {sT1}, v44, 48
    v_mov_b32 v50, {sT0}
    v_fma_f32 v51, -v50, v50, {sT1}
    v_add_f32 v50, {sP}, v50
    v_max_f32 v51, 0, v51
    v_cvt_pk_bf16_f32 v50, v50, v51
    v_and_b32 v51, {sHI}, v50
    v_lshlrev_b32 v57, 16, v50
    v_add_f32 v51, {hex(f2u(1e-5))}, v51
    v_sub_f32 v20, v20, v57
    v_cvt_pk_bf16_f32 v51, 0, v51
    v_sub_f32 v21, v21, v57
    v_sqrt_f32 v51, v51
    v_sub_f32 v22, v22, v57
    v_sub_f32 v23, v23, v57
    v_cvt_pk_bf16_f32 v51, 0, v51
    v_sub_f32 v24, v24, v57
    v_rcp_f32 v58, v51
    v_sub_f32 v25, v25, v57
    v_sub_f32 v26, v26, v57
    v_sub_f32 v27, v27, v57
    v_mul_f32 v52, {hex(f2u(2.0**-68))}, v58
    """)
    for i in range(4): a(f"v_cvt_pk_bf16_f32 v{28+i}, v{20+2*i}, v{21+2*i}")
    for i in range(4): a(f"v_lshlrev_b32 v{20+2*i}, 16, v{28+i}\nv_and_b32 v{21+2*i}, {sHI}, v{28+i}")
    for i in range(8): a(f"v_mul_f32 v{20+i}, v52, v{20+i}")
    for i in range(4): a(f"v_cvt_pk_bf16_f32 v{28+i}, v{20+2*i}, v{21+2*i}")
    a(f"""
    s_mov_b32 exec_hi, 0x00ffffff
    ds_write_b128 v18, v[28:31] offset:7680
    s_mov_b32 {sT0}, {BIAS}
    """)
    for i in range(4): a(f"v_add_u32 v{32+i}, {sT0}, v{28+i}")
    a("s_waitcnt vmcnt(4)")
    for i in range(4): a(f"v_dot2c_f32_bf16 v46, v{32+i}, v{14+i}")
    a(f"""
    s_mov_b32 exec_hi, -1
    s_waitcnt lgkmcnt(0)
    s_barrier
    s_cmp_eq_u32 {sWV}, 7
    s_cbranch_scc1 L_nogran
    ds_read_b64_tr_b16 v[20:21], v19 offset:7680
    ds_read_b64_tr_b16 v[22:23], v19 offset:{7680+3840}
    L_nogran:
    v_add_f32_dpp v46, v46, v46 row_ror:8 row_mask:0xf bank_mask:0xf
    v_add_f32_dpp v46, v46, v46 row_ror:4 row_mask:0xf bank_mask:0xf
    v_add_f32_dpp v46, v46, v46 row_ror:2 row_mask:0xf bank_mask:0xf
    v_add_f32_dpp v46, v46, v46 row_ror:1 row_mask:0xf bank_mask:0xf
    s_cbranch_scc1 L_nogran2
    s_waitcnt lgkmcnt(0)
    """)
    for i in range(4): a(f"v_or_b32 v{20+i}, s{sMSK+i}, v{20+i}")
    a(f"""
    global_store_dwordx4 v49, v[20:23], {XNB} sc1
    L_nogran2:
    s_nop 0
    v_add_f32_dpp v46, v46, v46 row_bcast:15 row_mask:0xa bank_mask:0xf
    s_lshl_b32 {sT2}, {sTB}, 3
    s_add_u32 {sT2}, {sT2}, {sWV}
    v_add_f32_dpp v46, v46, v46 row_bcast:31 row_mask:0xc bank_mask:0xf
    s_lshl_b32 {sT0}, {sWV}, 4
    s_add_u32 {sT0}, {sT0}, {CANDL}
    v_cvt_pk_bf16_f32 v46, 0, v46
    v_mov_b32 v50, {sT0}
    v_or_b32 v56, {sT2}, v46
    s_not_b32 {sT1}, s39
    v_mov_b32 v59, {sT1}
    s_mov_b32 exec_lo, 0
    s_mov_b32 exec_hi, 0x80000000
    ds_write_b128 v50, v[56:59]
    s_mov_b64 exec, -1
    s_waitcnt lgkmcnt(0)
    s_barrier
    """)
    stamp(2)
    a(f"""
    s_cmp_lg_u32 {sWV}, 7
    s_cbranch_scc1 L_nocand
    v_and_b32 v50, 7, v1
    v_lshlrev_b32 v50, 4, v50
    v_add_u32 v50, {CANDL}, v50
    ds_read_b128 v[56:59], v50
    s_lshl_b32 {sT0}, {sTB}, 4
    s_add_u32 {sT0}, {sT0}, {WS_CAND}
    v_mov_b32 v51, {sT0}
    s_waitcnt lgkmcnt(0)
    v_max_f32_dpp v50, v56, v56 row_ror:4 row_mask:0xf bank_mask:0xf
    v_max_f32_dpp v50, v50, v50 row_ror:2 row_mask:0xf bank_mask:0xf
    v_max_f32_dpp v50, v50, v50 row_ror:1 row_mask:0xf bank_mask:0xf
    v_cmp_eq_u32 vcc, v50, v56
    s_and_b32 exec_lo, vcc_lo, 0xff
    s_mov_b32 exec_hi, 0
    global_store_dwordx4 v51, v[56:59], {WS} sc1
    s_mov_b64 exec, -1
    L_nocand:
    s_cmp_ge_u32 s2, 224
    s_cbranch_scc1 L_ffn
    """)
    LOG2E = hex(f2u(1.4426950408889634))
    a(f"""
    s_lshl_b32 {sT0}, {sLD}, 16
    s_and_b32 {sT1}, {sLD}, {sHI}
    s_cmp_eq_u32 {sCH}, 0
    s_cselect_b32 {sT0}, {sT0}, {sT1}
    s_mov_b32 {sT1}, {LOG2E}
    v_mov_b32 v50, {sT0}
    v_mul_f32 v50, {sT1}, v50
    s_waitcnt vmcnt(1)
    v_lshlrev_b32 v40, 16, v40
    v_exp_f32 v50, v50
    v_mul_f32 v40, {sT1}, v40
    v_lshlrev_b32 v41, 16, v41
    v_exp_f32 v40, v40
    v_cvt_pk_bf16_f32 v50, 0, v50
    v_lshlrev_b32 v42, 16, v42
    v_lshlrev_b32 v43, 16, v43
    v_cvt_pk_bf16_f32 v40, 0, v40
    v_mul_f32 v41, v50, v41
    v_add_f32 v51, v50, v50
    v_mul_f32 v40, v50, v40
    v_mul_f32 v41, 0.15915494, v41
    v_mul_f32 v40, {hex(f2u(-1.4426950408889634))}, v40
    v_mul_f32 v42, v51, v42
    v_mul_f32 v43, v51, v43
    """)
    for (p, r, t) in ((1, 60, 20), (8, 63, 24), (128, 66, 28)):
        if p == 1: a(f"v_exp_f32 v{t}, v40\nv_fract_f32 v{t+1}, v41")
        else: a(f"v_mul_f32 v{t}, {hex(f2u(p))}, v40\nv_mul_f32 v{t+1}, {hex(f2u(p))}, v41\nv_exp_f32 v{t}, v{t}\nv_fract_f32 v{t+1}, v{t+1}")
    for (p, r, t) in ((1, 60, 20), (8, 63, 24), (128, 66, 28)):
        a(f"v_cos_f32 v{t+2}, v{t+1}\nv_sin_f32 v{t+3}, v{t+1}")
    for (p, r, t) in ((1, 60, 20), (8, 63, 24), (128, 66, 28)):
        a(f"v_mul_f32 v{r}, v{t}, v{t+2}\nv_mul_f32 v{r+1}, v{t}, v{t+3}")
    for r in (60, 63, 66): a(f"v_sub_f32 v{r+2}, 0, v{r+1}")
    tmp = [0]
    def put(row, re, im, conj):
        t = 52 + tmp[0] % 4; tmp[0] += 1
        return [f"v_cvt_pk_bf16_f32 v{t}, v{re}, {'-' if conj else ''}v{im}", f"ds_write_addtid_b32 v{t} offset:{row*RS}"]
    def cmul(d, x, w):
        return [f"v_mul_f32 v{d}, v{x}, v{w}", f"v_mul_f32 v{d+1}, v{x}, v{w+1}",
                f"v_fmac_f32 v{d}, v{x+1}, v{w+2}", f"v_fmac_f32 v{d+1}, v{x+1}, v{w}"]
    def inter(x, y):
        for i in range(max(len(x), len(y))):
            if i < len(x): a(x[i])
            if i < len(y): a(y[i])
    G0 = 21
    inter(cmul(69, 66, 66) + ["v_sub_f32 v71, 0, v70"], cmul(72, 60, 60) + ["v_sub_f32 v74, 0, v73"])
    inter(cmul(75, 72, 72) + ["v_sub_f32 v77, 0, v76"], ["v_mov_b32 v51, 0x3f80", f"ds_write_addtid_b32 v51 offset:{G0*RS}"] + put(0, 42, 43, True))
    inter(put(G0 + 1, 63, 64, False), put(G0 + 16, 66, 67, False))
    ga = []; src = 63
    for j in range(2, 16):
        d = 20 + 2 * (j & 1); ga.append((d, src, 63, G0 + j, False)); src = d
    gb = []; src = 66
    for j in range(17, 32):
        d = 24 + 2 * (j & 1); gb.append((d, src, 63, G0 + j, False)); src = d
    fa = []; src = 42
    for h in range(1, 8):
        d = 28 + 2 * (h & 1); fa.append((d, src, 60, h, True)); src = d
    fb = [(80, 42, 69, 8, True), (82, 80, 69, 12, True), (84, 82, 69, 14, True)]
    src = 84
    for k in range(5):
        d = 32 + 2 * (k & 1); fb.append((d, src, 69, 16 + k, True)); src = d
    fc = [(28, 80, 72, 9, True), (30, 28, 72, 10, True), (28, 30, 72, 11, True), (30, 82, 75, 13, True), (28, 84, 75, 15, True)]
    A_ = ga + fa + fc[:3]
    B_ = fb + gb + [(32, 82, 75, 13, True), (34, 84, 75, 15, True)]
    for i in range(max(len(A_), len(B_))):
        xs = []
        for L in (A_, B_):
            if i < len(L):
                d, s_, w, row, cj = L[i]
                xs.append(cmul(d, s_, w) + put(row, d, d + 1, cj))
            else: xs.append([])
        inter(xs[0], xs[1])
    stamp(3)
    for st in range(8):
        a(f"ds_read_b128 v[{120+8*st}:{123+8*st}], v112 offset:{32*st}")
        a(f"ds_read_b128 v[{124+8*st}:{127+8*st}], v112 offset:{G0*RS+32*st}")
        if st >= 4:
            s2_ = st - 4
            a(f"s_waitcnt lgkmcnt(8)")
            a(f"v_mfma_f32_32x32x16_bf16 v[20:35], v[{120+8*s2_}:{123+8*s2_}], v[{124+8*s2_}:{127+8*s2_}], {'0' if s2_==0 else 'v[20:35]'}")
    for s2_ in range(4, 8):
        a(f"s_waitcnt lgkmcnt({2*(7-s2_)})")
        a(f"v_mfma_f32_32x32x16_bf16 v[20:35], v[{120+8*s2_}:{123+8*s2_}], v[{124+8*s2_}:{127+8*s2_}], v[20:35]")
    for s_ in range(3): a(f"ds_write_b128 v113, v[{20+4*s_}:{23+4*s_}] offset:{4*RS*s_}")
    a(f"""
    s_waitcnt lgkmcnt(0)
    s_barrier
    s_cmp_ge_u32 {sWV}, 6
    s_cbranch_scc1 L_noR
    """)
    for nq in range(4): a(f"ds_read_b128 v[{20+4*nq}:{23+4*nq}], v114 offset:{256*nq}")
    a("s_waitcnt lgkmcnt(2)")
    for i in range(4): a(f"v_add_f32 v{20+i}, v{20+i}, v{24+i}")
    a("s_waitcnt lgkmcnt(0)")
    for i in range(4): a(f"v_add_f32 v{28+i}, v{28+i}, v{32+i}")
    for i in range(4): a(f"v_add_f32 v{20+i}, v{20+i}, v{28+i}")
    a(f"""
    v_cvt_pk_bf16_f32 v20, v20, v21
    v_cvt_pk_bf16_f32 v22, v22, v23
    ds_write_b16 v115, v20
    ds_write_b16_d16_hi v116, v20
    ds_write_b16 v117, v22
    ds_write_b16_d16_hi v118, v22
    s_waitcnt lgkmcnt(0)
    L_noR:
    s_barrier
    """)
    for i in range(7): a(f"ds_read_u16 v{20+i}, v{100+i}")
    a(f"""
    ds_read_u16 v27, v108
    s_waitcnt lgkmcnt(4)
    v_lshl_or_b32 v28, v21, 16, v20
    v_lshl_or_b32 v29, v23, 16, v22
    v_lshl_or_b32 v30, v22, 16, v21
    v_lshl_or_b32 v32, v23, 16, v22
    ds_write_b64 v107, v[28:29]
    s_waitcnt lgkmcnt(2)
    v_lshl_or_b32 v31, v24, 16, v23
    v_lshl_or_b32 v33, v25, 16, v24
    v_lshl_or_b32 v34, v24, 16, v23
    v_lshl_or_b32 v35, v26, 16, v25
    ds_write_b64 v107, v[30:31] offset:{TCS}
    ds_write_b64 v107, v[32:33] offset:{2*TCS}
    ds_write_b64 v107, v[34:35] offset:{3*TCS}
    s_waitcnt lgkmcnt(4)
    ds_write_b16 v109, v27
    v_lshrrev_b32 v52, 1, v0
    v_and_b32 v53, 1, v0
    v_mul_u32_u24 v50, 7168, v52
    v_lshl_add_u32 v50, v53, 4, v50
    s_lshl_b32 {sT0}, {sPR}, 5
    v_add_u32 v50, {sT0}, v50
    v_mul_u32_u24 v51, {US}, v53
    v_lshl_add_u32 v51, v52, 4, v51
    v_add_u32 v51, {U+480}, v51
    s_waitcnt lgkmcnt(0)
    s_barrier
    """)
    stamp(4)
    a(f"global_load_dwordx4 v[20:23], v50, {XNB} sc1")
    AF = 120
    def aload(m):
        a(f"ds_read_b64 v[{AF+4*m}:{AF+4*m+1}], v110 offset:{64*(32-m)}\nds_read_b64 v[{AF+4*m+2}:{AF+4*m+3}], v110 offset:{64*(32-m)+8}")
    for m in range(16): aload(m)
    a(f"s_cmp_eq_u32 {sQ}, 0\ns_cbranch_scc1 L_aq0")
    for m in range(16, 33): aload(m)
    a("s_branch L_adone\nL_aq0:")
    a(f"""
    s_mul_i32 {sT0}, {sCH}, {KCS}
    s_add_u32 {sT0}, {sT0}, {KC + 1024 + 4*(64-63-3)}
    v_lshlrev_b32 v52, 2, v3
    v_sub_u32 v52, v2, v52
    v_lshl_add_u32 v53, v52, 2, {sT0}
    """)
    for mu in range(4):
        a(f"ds_read2_b32 v[{184+4*mu}:{185+4*mu}], v53 offset0:{16*mu+3} offset1:{16*mu+2}")
        a(f"ds_read2_b32 v[{186+4*mu}:{187+4*mu}], v53 offset0:{16*mu+1} offset1:{16*mu}")
    a(f"""
    v_lshlrev_b32 v54, 3, v3
    v_sub_u32 v54, v2, v54
    v_mov_b32 v55, 0x3f80
    v_mov_b32 v56, 0x3f800000
    """)
    for dw in range(4):
        for (dst, lo, n) in ((200 + dw, -4, 9), (204 + dw, 5, 7)):
            a(f"""
            v_add_u32 v57, {12 - 2*dw - lo}, v54
            v_add_u32 v58, {12 - 2*dw - 1 - lo}, v54
            v_cmp_gt_u32 vcc, {n}, v57
            v_cmp_gt_u32 s[62:63], {n}, v58
            v_cndmask_b32 v57, 0, v55, vcc
            v_cndmask_b32 v58, 0, v56, s[62:63]
            v_or_b32 v{dst}, v57, v58
            """)
    a("s_waitcnt lgkmcnt(0)")
    for r in range(4):
        a(f"v_cmp_le_i32 vcc, {r}, v52\nv_cndmask_b32 v{184+r}, 0, v{184+r}, vcc")
    a(f"""
    L_adone:
    s_mov_b32 {sCNT}, 0
    s_mov_b32 {sT0}, {TAGM}
    L_poll1:
    s_waitcnt vmcnt(0)
    v_xor_b32 v24, s{sMSK}, v20
    v_bitop3_b32 v24, v24, v21, s{sMSK+1} bitop3:0xf6
    v_bitop3_b32 v24, v24, v22, s{sMSK+2} bitop3:0xf6
    v_bitop3_b32 v24, v24, v23, s{sMSK+3} bitop3:0xf6
    v_and_b32 v24, {sT0}, v24
    v_cmp_ne_u32 vcc, 0, v24
    s_add_u32 {sCNT}, {sCNT}, 1
    s_cbranch_vccz L_poll1_done
    s_cmp_ge_u32 {sCNT}, {SPIN}
    s_cbranch_scc1 L_poll1_done
    s_mov_b64 exec, vcc
    global_load_dwordx4 v[20:23], v50, {XNB} sc1
    s_branch L_poll1
    L_poll1_done:
    s_mov_b64 exec, -1
    """)
    for i in range(4): a(f"v_add_u32 v{20+i}, s{sDEC+i}, v{20+i}")
    a(f"""
    ds_write_b128 v51, v[20:23]
    s_waitcnt lgkmcnt(0)
    s_barrier
    """)
    stamp(5)
    NB = 6; BF = 60
    UP = "v[20:23]"; LO = "v[24:27]"
    def bload(mp): a(f"ds_read_b128 v[{BF+4*(mp%NB)}:{BF+4*(mp%NB)+3}], v111 offset:{64*(40-mp)}")
    for mp in range(NB - 1): bload(mp)
    a(f"""
    s_or_b32 {sT0}, s2, {sWV}
    s_cmp_lg_u32 {sT0}, 0
    s_cbranch_scc1 L_noE
    v_not_b32 v28, s36
    v_not_b32 v29, s37
    v_not_b32 v30, s38
    v_not_b32 v31, s39
    v_mov_b32 v32, {WS_E}
    s_mov_b64 exec, 1
    global_store_dwordx4 v32, v[28:31], {WS} sc1
    s_mov_b64 exec, -1
    L_noE:
    """)
    for mp in range(41):
        if mp == 16: a(f"s_cmp_eq_u32 {sQ}, 0\ns_cbranch_scc1 L_seg3")
        if mp == 32: a(f"s_cmp_eq_u32 {sQ}, 1\ns_cbranch_scc1 L_convdone")
        if mp + NB - 1 <= 40:
            bload(mp + NB - 1); a(f"s_waitcnt lgkmcnt({NB-1})")
        else: a(f"s_waitcnt lgkmcnt({40-mp})")
        b = f"v[{BF+4*(mp%NB)}:{BF+4*(mp%NB)+3}]"
        if mp <= 32: a(f"v_mfma_f32_16x16x32_bf16 {UP}, v[{AF+4*mp}:{AF+4*mp+3}], {b}, {'0' if mp==0 else UP}")
        if mp >= 8: a(f"v_mfma_f32_16x16x32_bf16 {LO}, v[{AF+4*(mp-8)}:{AF+4*(mp-8)+3}], {b}, {'0' if mp==8 else LO}")
    a("s_branch L_convdone\nL_seg3:")
    o3 = 2048 - 448 + 480 - 56
    a("s_waitcnt lgkmcnt(0)")
    for nu in range(4):
        a(f"ds_read_b64 v[{60+4*nu}:{61+4*nu}], v111 offset:{o3+512*nu}\nds_read_b64 v[{62+4*nu}:{63+4*nu}], v111 offset:{o3+512*nu+8}")
    for nu in range(4):
        a(f"s_waitcnt lgkmcnt({6-2*nu})")
        a(f"v_mfma_f32_16x16x32_bf16 v[{208+8*nu}:{211+8*nu}], v[{60+4*nu}:{63+4*nu}], v[200:203], 0")
        a(f"v_mfma_f32_16x16x32_bf16 v[{212+8*nu}:{215+8*nu}], v[{60+4*nu}:{63+4*nu}], v[204:207], 0")
    for nu in range(4):
        for r in range(4): a(f"v_cvt_pk_bf16_f32 v{76+4*nu+r}, v{208+8*nu+r}, v{212+8*nu+r}")
        for mu in range(4 - nu):
            c = nu + mu
            a(f"v_mfma_f32_16x16x32_bf16 v[{28+4*c}:{31+4*c}], v[{76+4*nu}:{79+4*nu}], v[{184+4*mu}:{187+4*mu}], {'0' if nu==0 else f'v[{28+4*c}:{31+4*c}]'}")
    def yaddr(dst):
        a(f"""
        v_lshlrev_b32 v52, 2, v3
        v_and_b32 v52, 8, v52
        v_or_b32 v52, {sCH}, v52
        v_xor_b32 v52, v2, v52
        v_lshlrev_b32 v52, 4, v52
        v_lshl_add_u32 v{dst}, v3, 8, v52
        """)
    yaddr(53)
    a(f"s_lshl_b32 {sT0}, {sCH}, 12\nv_add_u32 v53, {sT0}, v53")
    for c in range(4): a(f"ds_write_b128 v53, v[{28+4*c}:{31+4*c}] offset:{YP+1024*c}")
    a("L_convdone:")
    yaddr(53)
    a(f"""
    s_lshl_b32 {sT0}, {sCH}, 13
    s_lshl_b32 {sT1}, {sQ}, 11
    s_add_u32 {sT0}, {sT0}, {sT1}
    v_add_u32 v53, {sT0}, v53
    v_and_b32 v54, 1, v1
    v_lshrrev_b32 v55, 2, v1
    v_bfe_u32 v56, v1, 1, 1
    v_lshl_or_b32 v57, v56, 3, v54
    v_xor_b32 v55, v55, v57
    v_lshlrev_b32 v55, 4, v55
    v_lshl_add_u32 v55, v56, 9, v55
    s_lshl_b32 {sT0}, {sWV}, 10
    v_add_u32 v55, {sT0}, v55
    v_lshl_add_u32 v56, v54, 12, v55
    v_lshl_add_u32 v55, v54, 13, v55
    s_nop 1
    ds_write_b128 v53, {UP} offset:{YL+1024}
    ds_write_b128 v53, {LO} offset:{YL}
    s_waitcnt lgkmcnt(0)
    s_barrier
    """)
    stamp(6)
    a(f"""
    ds_read_b128 v[20:23], v55 offset:{YL}
    ds_read_b128 v[24:27], v55 offset:{YL+256}
    s_cmp_lt_u32 {sWV}, 4
    s_cbranch_scc1 L_nopart
    ds_read_b128 v[28:31], v56 offset:{YP-4096}
    ds_read_b128 v[32:35], v56 offset:{YP-4096+256}
    s_waitcnt lgkmcnt(0)
    """)
    for i in range(8): a(f"v_add_f32 v{20+i}, v{20+i}, v{28+i}")
    a("L_nopart:\ns_waitcnt lgkmcnt(0)")
    for i in range(4): a(f"v_cvt_pk_bf16_f32 v{28+i}, v{20+2*i}, v{21+2*i}")
    a(f"global_store_dwordx4 v7, v[28:31], {YB} sc1")
    stamp(7)
    a(f"""
    L_epi:
    s_cmp_eq_u32 {sWV}, 7
    s_cbranch_scc1 L_fin
    v_lshlrev_b32 v50, 1, v0
    global_load_ushort v40, v50, {DSK}
    ds_read_b64_tr_b16 v[60:61], v19
    ds_read_b64_tr_b16 v[62:63], v19 offset:3840
    ds_read_b64_tr_b16 v[64:65], v19 offset:7680
    ds_read_b64_tr_b16 v[66:67], v19 offset:{7680+3840}
    v_lshrrev_b32 v52, 1, v0
    v_and_b32 v53, 1, v0
    v_lshlrev_b32 v52, 13, v52
    v_lshl_add_u32 v52, v53, 4, v52
    s_lshl_b32 {sT0}, {sTB}, 5
    v_add_u32 v52, {sT0}, v52
    v_mov_b32 v53, {Y_IDX}
    s_mul_i32 {sT0}, {sTB}, 7168
    s_add_u32 {sT0}, {sT0}, 3584
    v_add_u32 v50, {sT0}, v50
    s_mov_b32 {sT1}, {BIAS}
    s_waitcnt lgkmcnt(0)
    """)
    for i in range(4):
        a(f"v_add_u32 v{64+i}, {sT1}, v{64+i}\nv_lshlrev_b32 v{70+2*i}, 16, v{60+i}\nv_and_b32 v{71+2*i}, {sHI}, v{60+i}")
    for i in range(4): a(f"v_lshlrev_b32 v{80+2*i}, 16, v{64+i}\nv_and_b32 v{81+2*i}, {sHI}, v{64+i}")
    a("s_waitcnt vmcnt(0)\nv_lshlrev_b32 v40, 16, v40")
    a(f"global_load_dwordx4 v[20:23], v52, {YB} sc1\nglobal_load_dword v24, v53, {YB} sc1")
    for i in range(8): a(f"v_mul_f32 v{90+i}, v40, v{80+i}")
    for i in range(4): a(f"v_cvt_pk_bf16_f32 v{60+i}, v{90+2*i}, v{91+2*i}")
    for i in range(4): a(f"v_lshlrev_b32 v{90+2*i}, 16, v{60+i}\nv_and_b32 v{91+2*i}, {sHI}, v{60+i}")
    a(f"""
    s_mov_b32 {sCNT}, 0
    L_poll2:
    s_waitcnt vmcnt(0)
    v_max3_u32 v25, v20, v21, v22
    v_max3_u32 v25, v25, v23, v24
    v_cmp_eq_u32 vcc, -1, v25
    s_add_u32 {sCNT}, {sCNT}, 1
    s_cbranch_vccz L_poll2_done
    s_cmp_ge_u32 {sCNT}, {SPIN}
    s_cbranch_scc1 L_poll2_done
    s_mov_b64 exec, vcc
    global_load_dwordx4 v[20:23], v52, {YB} sc1
    global_load_dword v24, v53, {YB} sc1
    s_branch L_poll2
    L_poll2_done:
    s_mov_b64 exec, -1
    """)
    stamp(8)
    a(f"v_readfirstlane_b32 {sIDX}, v24")
    for i in range(4): a(f"v_lshlrev_b32 v{28+2*i}, 16, v{20+i}\nv_and_b32 v{29+2*i}, {sHI}, v{20+i}")
    for base in (90, 70):
        for i in range(8): a(f"v_add_f32 v{28+i}, v{28+i}, v{base+i}")
        for i in range(4): a(f"v_cvt_pk_bf16_f32 v{20+i}, v{28+2*i}, v{29+2*i}")
        for i in range(4): a(f"v_lshlrev_b32 v{28+2*i}, 16, v{20+i}\nv_and_b32 v{29+2*i}, {sHI}, v{20+i}")
    for i in range(8): a(f"v_add_f32 v{28+i}, v{28+i}, v{80+i}")
    for i in range(4): a(f"v_cvt_pk_bf16_f32 v{20+i}, v{28+2*i}, v{29+2*i}")
    a(f"s_lshl_b32 {sT0}, {sTB}, 3\ns_sub_u32 {sT0}, {sIDX}, {sT0}")
    for r in range(8):
        a(f"s_cmp_eq_u32 {sT0}, {r}\ns_cbranch_scc1 L_sk{r}")
        a(f"global_store_short{'_d16_hi' if r & 1 else ''} v50, v{20+r//2}, {OUT} offset:{896*(r-4)}")
        a(f"L_sk{r}:")
    a("s_branch L_fin")
    def perms(src, dst):
        for kp in range(4):
            for dw in range(4):
                a(f"v_perm_b32 v{dst+4*(2*dw)+kp}, v{src+4*(2*kp+1)+dw}, v{src+4*(2*kp)+dw}, {sT2}")
                a(f"v_perm_b32 v{dst+4*(2*dw+1)+kp}, v{src+4*(2*kp+1)+dw}, v{src+4*(2*kp)+dw}, {sT3}")
    def gemv(afrag, w, acc, res):
        for e in range(8): a(f"v_mfma_f32_16x16x32_bf16 v[{acc+4*e}:{acc+4*e+3}], v[{afrag}:{afrag+3}], v[{w+4*e}:{w+4*e+3}], 0")
    def fold(acc, res):
        for e in range(4): a(f"v_add_f32_dpp v{res+e}, v{acc+4*e+1}, v{acc+4*e} row_shl:8 row_mask:0xf bank_mask:0x3")
        for e in range(4, 8): a(f"v_add_f32_dpp v{res+e-4}, v{acc+4*e}, v{acc+4*e+1} row_shr:8 row_mask:0xf bank_mask:0xc")
    a(f"""
    L_ffn:
    s_cmp_eq_u32 {sWV}, 7
    s_cbranch_scc1 L_ffn7
    s_cmp_ge_u32 {sFI}, 28
    s_cbranch_scc1 L_spare
    v_lshrrev_b32 v50, 3, v2
    v_lshl_add_u32 v50, v50, 2, v3
    v_and_b32 v51, 7, v2
    v_lshlrev_b32 v51, 4, v51
    s_movk_i32 {sT0}, {8*3584}
    v_mad_u32_u24 v52, v50, {sT0}, v51
    s_mul_i32 {sT0}, {sWV}, {64*3584}
    s_lshl_b32 {sT1}, {sFI}, 7
    s_add_u32 {sT0}, {sT0}, {sT1}
    s_add_u32 {sT0}, {sT0}, 3584
    v_add_u32 v52, {sT0}, v52
    v_add_u32 v53, {3*3584}, v52
    v_add_u32 v54, {6*3584}, v52
    s_movk_i32 {sT0}, {8*896}
    v_mad_u32_u24 v55, v50, {sT0}, v51
    s_mul_i32 {sT0}, {sFI}, {64*896}
    s_lshl_b32 {sT1}, {sWV}, 7
    s_add_u32 {sT0}, {sT0}, {sT1}
    s_add_u32 {sT0}, {sT0}, 3584
    v_add_u32 v55, {sT0}, v55
    """)
    for (base, ptr) in ((60, WG_), (92, WU)):
        for e in range(8): a(f"global_load_dwordx4 v[{base+4*e}:{base+4*e+3}], v{52+e//3}, {ptr} offset:{3584*(e%3-1)}")
    for e in range(8): a(f"global_load_dwordx4 v[{124+4*e}:{127+4*e}], v55, {WD} offset:{896*(e-4)}")
    a(f"""
    s_mov_b32 {sT2}, 0x05040100
    s_mov_b32 {sT3}, 0x07060302
    v_and_b32 v50, 1, v2
    v_lshlrev_b32 v50, 6, v50
    v_lshl_add_u32 v50, v3, 4, v50
    s_lshl_b32 {sT0}, {sWV}, 7
    v_add_u32 v50, {sT0}, v50
    v_lshrrev_b32 v56, 3, v2
    v_lshlrev_b32 v56, 4, v56
    v_lshl_add_u32 v56, v51, 1, v56
    s_lshl_b32 {sT1}, {sWV}, 9
    v_add_u32 v56, {sT1}, v56
    v_lshlrev_b32 v57, 2, v1
    v_lshl_add_u32 v58, v1, 1, {sT0}
    s_lshl_b32 {sT0}, s2, 13
    s_lshl_b32 {sT1}, {sWV}, 8
    s_add_u32 {sT0}, {sT0}, {sT1}
    v_add_u32 v59, {sT0}, v4
    s_waitcnt vmcnt(16)
    """)
    perms(60, 156); a("s_waitcnt vmcnt(8)"); perms(92, 188); a("s_waitcnt vmcnt(0)"); perms(124, 220)
    stamp(3)
    a(f"""
    s_barrier
    ds_read_b128 v[20:23], v50 offset:{FXN}
    s_waitcnt lgkmcnt(0)
    """)
    stamp(5)
    gemv(20, 156, 60, 0); gemv(20, 188, 92, 0)
    fold(60, 24); fold(92, 28)
    a(f"""
    s_mov_b64 exec, 0xffff
    ds_write_b128 v56, v[24:27] offset:{FGP}
    ds_write_b128 v56, v[28:31] offset:{FGP+256}
    s_mov_b64 exec, -1
    s_waitcnt lgkmcnt(0)
    s_barrier
    """)
    for p in range(7): a(f"ds_read2st64_b32 v[{24+2*p}:{25+2*p}], v57 offset0:{FGP//256+2*p} offset1:{FGP//256+2*p+1}")
    a(f"""
    s_waitcnt lgkmcnt(0)
    v_add_f32 v24, v24, v26
    v_add_f32 v25, v25, v27
    v_add_f32 v28, v28, v30
    v_add_f32 v29, v29, v31
    v_add_f32 v32, v32, v34
    v_add_f32 v33, v33, v35
    v_add_f32 v24, v24, v28
    v_add_f32 v25, v25, v29
    v_add_f32 v32, v32, v36
    v_add_f32 v33, v33, v37
    v_add_f32 v24, v24, v32
    v_add_f32 v25, v25, v33
    v_cvt_pk_bf16_f32 v24, v24, v25
    v_lshlrev_b32 v26, 16, v24
    v_and_b32 v25, {sHI}, v24
    v_mul_f32 v27, {hex(f2u(-1.4426950408889634))}, v26
    v_exp_f32 v27, v27
    v_add_f32 v27, 1.0, v27
    v_rcp_f32 v27, v27
    v_mul_f32 v26, v26, v27
    v_cvt_pk_bf16_f32 v26, 0, v26
    v_mul_f32 v26, v26, v25
    v_cvt_pk_bf16_f32 v26, v26, v26
    ds_write_b16 v58, v26 offset:{FH}
    ds_read_b128 v[20:23], v50 offset:{FH}
    s_waitcnt lgkmcnt(0)
    """)
    gemv(20, 220, 60, 0); fold(60, 24)
    a(f"""
    s_mov_b64 exec, 0xffff
    global_store_dwordx4 v59, v[24:27], {YB} sc1
    s_mov_b64 exec, -1
    """)
    stamp(7)
    a(f"""
    s_branch L_epi
    L_spare:
    s_barrier
    s_branch L_epi
    L_ffn7:
    v_add_u32 v50, {WS_CAND}, v4
    s_not_b32 {sT3}, s39
    s_mov_b32 {sCNT}, 0
    s_waitcnt vmcnt(0)
    L_poll3:
    """)
    for i in range(4): a(f"global_load_dwordx4 v[{20+4*i}:{23+4*i}], v50, {WS} offset:{1024*i} sc1")
    a(f"""
    s_waitcnt vmcnt(0)
    v_xor_b32 v51, {sT3}, v23
    v_bitop3_b32 v51, v51, v27, {sT3} bitop3:0xf6
    v_bitop3_b32 v51, v51, v31, {sT3} bitop3:0xf6
    v_bitop3_b32 v51, v51, v35, {sT3} bitop3:0xf6
    v_cmp_ne_u32 vcc, 0, v51
    s_add_u32 {sCNT}, {sCNT}, 1
    s_cmp_ge_u32 {sCNT}, {SPIN}
    s_cbranch_scc1 L_poll3_done
    s_mov_b64 exec, vcc
    s_cbranch_execnz L_poll3
    L_poll3_done:
    s_mov_b64 exec, -1
    """)
    stamp(3)
    a(f"""
    s_cmp_ge_u32 {sFI}, 28
    s_cbranch_scc1 L_spare7
    v_max3_f32 v51, v20, v24, v28
    v_max_f32 v51, v51, v32
    v_cmp_eq_u32 vcc, v51, v24
    v_max_f32_dpp v52, v51, v51 row_ror:8 row_mask:0xf bank_mask:0xf
    v_cmp_eq_u32 s[62:63], v51, v28
    v_cndmask_b32 v21, v21, v25, vcc
    v_max_f32_dpp v52, v52, v52 row_ror:4 row_mask:0xf bank_mask:0xf
    v_cndmask_b32 v22, v22, v26, vcc
    v_cmp_eq_u32 vcc, v51, v32
    v_max_f32_dpp v52, v52, v52 row_ror:2 row_mask:0xf bank_mask:0xf
    v_cndmask_b32 v21, v21, v29, s[62:63]
    v_cndmask_b32 v22, v22, v30, s[62:63]
    v_max_f32_dpp v52, v52, v52 row_ror:1 row_mask:0xf bank_mask:0xf
    v_cndmask_b32 v21, v21, v33, vcc
    v_cndmask_b32 v22, v22, v34, vcc
    v_max_f32_dpp v52, v52, v52 row_bcast:15 row_mask:0xa bank_mask:0xf
    v_max_f32_dpp v52, v52, v52 row_bcast:31 row_mask:0xc bank_mask:0xf
    v_readlane_b32 {sP}, v52, 63
    s_and_b32 {sIDX}, {sP}, 0x7ff
    s_mul_i32 {sT0}, {sIDX}, 896
    v_add_u32 v53, {sT0}, v4
    s_mov_b32 exec_hi, 0x00ffffff
    global_load_dwordx4 v[10:13], v53, {X}
    s_mov_b32 exec_hi, -1
    v_cmp_eq_u32 vcc, {sP}, v51
    s_ff1_i32_b64 {sT1}, vcc
    s_and_b32 {sT1}, {sT1}, 63
    v_readlane_b32 {sT2}, v21, {sT1}
    v_readlane_b32 {sT3}, v22, {sT1}
    s_cmp_lg_u32 {sFI}, 0
    s_cbranch_scc1 L_noidx
    v_mov_b32 v54, {Y_IDX}
    v_mov_b32 v55, {sIDX}
    s_mov_b64 exec, 1
    global_store_dword v54, v55, {YB} sc1
    s_mov_b64 exec, -1
    s_waitcnt vmcnt(1)
    s_branch L_idx2
    L_noidx:
    s_waitcnt vmcnt(0)
    L_idx2:
    """)
    stamp(4)
    for i in range(4): a(f"v_lshlrev_b32 v{20+2*i}, 16, v{10+i}\nv_and_b32 v{21+2*i}, {sHI}, v{10+i}")
    for i in range(8): a(f"v_subrev_f32 v{20+i}, {sT2}, v{20+i}")
    for i in range(4): a(f"v_cvt_pk_bf16_f32 v{28+i}, v{20+2*i}, v{21+2*i}")
    for i in range(4): a(f"v_lshlrev_b32 v{20+2*i}, 16, v{28+i}\nv_and_b32 v{21+2*i}, {sHI}, v{28+i}")
    for i in range(8): a(f"v_mul_f32 v{20+i}, {sT3}, v{20+i}")
    for i in range(4): a(f"v_cvt_pk_bf16_f32 v{28+i}, v{20+2*i}, v{21+2*i}")
    a(f"""
    ds_write_b128 v4, v[28:31] offset:{FXN}
    ds_write_b128 v4, v[10:13] offset:{FXR}
    s_waitcnt lgkmcnt(0)
    s_barrier
    s_and_b32 {sT1}, {sFI}, 3
    s_lshl_b32 {sT1}, {sT1}, 2
    v_lshrrev_b32 v50, 2, v2
    v_add_u32 v50, {sT1}, v50
    v_and_b32 v51, 7, v50
    v_lshrrev_b32 v50, 3, v50
    v_lshlrev_b32 v51, 3, v51
    v_lshl_add_u32 v50, v50, 2, v51
    v_and_b32 v51, 3, v2
    s_lshr_b32 {sT1}, {sFI}, 2
    s_lshl_b32 {sT1}, {sT1}, 6
    v_add3_u32 v50, v50, v51, {sT1}
    v_lshlrev_b32 v51, 1, v50
    global_load_ushort v40, v51, {DSK}
    ds_read_u16 v41, v51 offset:{FXN}
    ds_read_u16 v42, v51 offset:{FXR}
    v_add_u32 v53, {sT0}, v51
    v_lshrrev_b32 v52, 1, v50
    v_and_b32 v50, 1, v50
    v_lshlrev_b32 v52, 13, v52
    v_lshl_add_u32 v52, v50, 4, v52
    s_lshr_b32 {sT1}, {sIDX}, 3
    s_lshl_b32 {sT1}, {sT1}, 5
    s_and_b32 {sT2}, {sIDX}, 6
    s_lshl_b32 {sT2}, {sT2}, 1
    s_add_u32 {sT1}, {sT1}, {sT2}
    v_add_u32 v52, {sT1}, v52
    v_lshlrev_b32 v54, 13, v3
    v_lshl_add_u32 v54, v2, 2, v54
    s_lshl_b32 {sT1}, {sFI}, 6
    s_add_u32 {sT1}, {sT1}, {Y_PART}
    v_add_u32 v54, {sT1}, v54
    """)
    for p in range(1, 7): a(f"v_add_u32 v{54+p}, {32768*p}, v54")
    a(f"""
    s_and_b32 {sT1}, {sP}, {sHI}
    v_mov_b32 v43, {sT1}
    v_mul_f32 v43, {hex(f2u(-1.4426950408889634))}, v43
    v_exp_f32 v43, v43
    v_add_f32 v43, 1.0, v43
    v_rcp_f32 v43, v43
    v_cvt_pk_bf16_f32 v43, 0, v43
    s_waitcnt vmcnt(0) lgkmcnt(0)
    v_lshlrev_b32 v40, 16, v40
    v_lshlrev_b32 v41, 16, v41
    v_lshlrev_b32 v42, 16, v42
    v_mul_f32 v40, v40, v41
    v_cvt_pk_bf16_f32 v40, 0, v40
    s_barrier
    s_mov_b32 {sCNT}, 0
    L_poll4:
    """)
    for p in range(7): a(f"global_load_dword v{20+p}, v{54+p}, {YB} sc1")
    a(f"""
    global_load_dword v27, v52, {YB} sc1
    s_waitcnt vmcnt(0)
    v_max3_u32 v28, v20, v21, v22
    v_max3_u32 v29, v23, v24, v25
    v_max3_u32 v28, v28, v26, v27
    v_max_u32 v28, v28, v29
    v_cmp_eq_u32 vcc, -1, v28
    s_add_u32 {sCNT}, {sCNT}, 1
    s_cmp_ge_u32 {sCNT}, {SPIN}
    s_cbranch_scc1 L_poll4_done
    s_mov_b64 exec, vcc
    s_cbranch_execnz L_poll4
    L_poll4_done:
    s_mov_b64 exec, -1
    """)
    stamp(8)
    a(f"""
    v_add_f32 v20, v20, v21
    v_add_f32 v22, v22, v23
    v_add_f32 v24, v24, v25
    v_add_f32 v20, v20, v26
    v_add_f32 v22, v22, v24
    s_bitcmp1_b32 {sIDX}, 0
    s_cselect_b32 {sT1}, 0, 16
    v_add_f32 v20, v20, v22
    v_lshlrev_b32 v27, {sT1}, v27
    v_mov_b32 v21, v20
    v_and_b32 v27, {sHI}, v27
    v_permlane32_swap_b32 v20, v21
    v_add_f32 v20, v20, v21
    v_add_f32 v27, v27, v40
    v_mov_b32 v21, v20
    v_cvt_pk_bf16_f32 v27, 0, v27
    v_permlane16_swap_b32 v20, v21
    v_add_f32 v20, v20, v21
    v_add_f32 v27, v27, v42
    v_cvt_pk_bf16_f32 v20, 0, v20
    v_cvt_pk_bf16_f32 v27, 0, v27
    v_mul_f32 v20, v20, v43
    v_cvt_pk_bf16_f32 v20, 0, v20
    v_add_f32 v20, v20, v41
    v_cvt_pk_bf16_f32 v20, 0, v20
    v_add_f32 v20, v20, v27
    v_cvt_pk_bf16_f32 v20, v20, v20
    s_mov_b64 exec, 0xffff
    global_store_short v53, v20, {OUT}
    s_mov_b64 exec, -1
    s_branch L_fin
    L_spare7:
    s_barrier
    L_fin:
    """)
    if diag:
        a("s_waitcnt vmcnt(0)")
        stamp(9)
        a(f"""
        s_lshl_b32 {sT0}, s2, 3
        s_add_u32 {sT0}, {sT0}, {sWV}
        s_lshl_b32 {sT0}, {sT0}, 6
        s_add_u32 {sT0}, {sT0}, {WS_STAMP}
        v_mov_b32 v50, {sT0}
        """)
        for i in range(10): a(f"v_mov_b32 v{20+i}, s{64+2*i}")
        a(f"v_mov_b32 v30, {sCNT}\nv_mov_b32 v31, 0\ns_mov_b64 exec, 1")
        for i in range(3): a(f"global_store_dwordx4 v50, v[{20+4*i}:{23+4*i}], {WS} offset:{16*i}")
        if opt.get("dbg"):
            a(f"""
            s_load_dwordx2 s[62:63], s[0:1], 104
            s_mov_b64 exec, -1
            v_mov_b32 v40, 0
            s_not_b32 {sT0}, s64
            v_writelane_b32 v40, {sT0}, 0
            s_cmp_ge_u32 s2, 224
            s_cbranch_scc1 L_dbg_ffn
            """)
            for i in range(10): a(f"v_writelane_b32 v40, s{64+2*i}, {1+i}")
            a(f"s_cmp_eq_u32 {sWV}, 0\ns_branch L_dbg2\nL_dbg_ffn:")
            for n, i in enumerate((3, 4, 8, 9)): a(f"v_writelane_b32 v40, s{64+2*i}, {11+n}")
            a(f"s_cmp_ge_u32 s2, 252\ns_cbranch_scc1 L_end\ns_cmp_eq_u32 {sWV}, 7\nL_dbg2:\ns_cbranch_scc0 L_end")
            a(f"v_lshlrev_b32 v41, 2, v1\ns_waitcnt lgkmcnt(0)\ns_mov_b64 exec, 0xffff\nglobal_atomic_umax v41, v40, s[62:63]")
    a("L_end:\ns_endpgm\nL_code_end:")
    rep = []
    body = hz.fix(a.text(), rep)
    if opt.get("verbose"):
        for r in rep: print("nop", r)
    return single_file(body, 256, 512, LDS_BYTES, 256, sgpr=96)

if __name__ == "__main__":
    open("k_diag.s", "w").write(gen({"diag": True}))
    open("k_dbg.s", "w").write(gen({"diag": True, "dbg": True}))
    open("k.s", "w").write(gen({"verbose": "-v" in sys.argv}))
```

```python
import sys, struct
from asmlib import *
import hz

def f2u(x): return struct.unpack("<I", struct.pack("<f", x))[0]

WS_E    = 0x0
WS_CAND = 0x1000
WS_XN   = 0x100000
WS_Y    = 0x300000
Y_PART  = 224 * 8192
Y_IDX   = Y_PART + 4096
WS_STAMP= 0x800000
RS    = 1040
CHS   = 53 * RS
LNX   = 110336
LNN   = LNX + 7680
CANDL = LNN + 7680
ZB    = CANDL + 128
KC    = ZB + 16
KCS   = 1568
TT    = 129024
TCS   = 2240
TTS   = 4 * TCS
U     = TT + 2 * TTS
US    = 4672
LDS_BYTES = ZB + 32768
YL    = 0
YP    = 16384
FXN = 0; FXR = 1024; FGP = 2048; FH = 8192
TAGM = 0x60006000
BIAS = (68 << 7) * 0x10001
SPIN = 200000

def gen(opt):
    diag = opt.get("diag", False)
    a = Asm()
    nst = [0]
    def stamp(i):
        if diag: a(f"s_memrealtime s[{64+2*i}:{65+2*i}]\ns_waitcnt lgkmcnt(0)")
    sWV="s3"; sTB="s6"; sPR="s7"; sCH="s40"; sQ="s41"; sHI="s42"; sP="s43"; sT0="s44"; sT1="s45"; sT2="s46"; sT3="s47"
    sLD="s48"; sIDX="s49"; sCNT="s50"; sFI="s51"; sDEC=52
    sMSK=56
    X="s[8:9]"; LOGA="s[10:11]"; AIM="s[12:13]"; CRE="s[14:15]"; CIM="s[16:17]"; LDT="s[18:19]"; DSK="s[20:21]"
    WR="s[24:25]"; WG_="s[26:27]"; WU="s[28:29]"; WD="s[30:31]"; OUT="s[32:33]"; WS="s[34:35]"
    YB="s[22:23]"; XNB="s[60:61]"
    if diag or opt.get("hold"): a("s_memrealtime s[64:65]")
    a(f"""
    s_cmp_ge_u32 s2, 256
    s_cbranch_scc1 L_end
    s_load_dwordx16 s[8:23], s[0:1], 0
    s_load_dwordx8 s[24:31], s[0:1], 64
    s_load_dwordx2 {OUT}, s[0:1], 96
    s_load_dwordx2 {WS}, s[0:1], 112
    s_getpc_b64 s[4:5]
    L_pc:
    v_lshrrev_b32 v2, 6, v0
    v_lshrrev_b32 v3, 2, v0
    v_readfirstlane_b32 {sWV}, v2
    v_lshlrev_b32 v3, 7, v3
    v_min_u32 v3, L_code_end-L_pc-4, v3
    global_load_dword v9, v3, s[4:5]
    v_and_b32 v1, 63, v0
    s_and_b32 {sT0}, s2, 7
    s_lshr_b32 {sT1}, s2, 3
    s_lshl_b32 {sTB}, {sT0}, 5
    s_add_u32 {sTB}, {sTB}, {sT1}
    s_mul_i32 {sPR}, {sT0}, 28
    s_add_u32 {sPR}, {sPR}, {sT1}
    s_lshl_b32 {sT2}, {sTB}, 3
    s_add_u32 {sT2}, {sT2}, {sWV}
    s_mul_i32 {sT3}, {sT2}, 896
    v_lshlrev_b32 v4, 4, v1
    v_add_u32 v5, {sT3}, v4
    s_bfe_u32 {sCH}, {sWV}, 0x10001
    s_and_b32 {sQ}, {sWV}, 1
    s_cmp_ge_u32 {sWV}, 4
    s_cselect_b32 {sT0}, 3, 0
    s_xor_b32 {sQ}, {sQ}, {sT0}
    s_sub_u32 {sFI}, s2, 224
    v_mov_b32 v36, -1
    v_mov_b32 v37, -1
    v_mov_b32 v38, -1
    v_mov_b32 v39, -1
    v_lshlrev_b32 v6, 4, v0
    s_cmp_ge_u32 s2, 224
    s_cselect_b32 {sT0}, s2, {sPR}
    s_lshl_b32 {sT0}, {sT0}, 13
    v_add_u32 v7, {sT0}, v6
    s_mov_b32 exec_hi, 0x00ffffff
    s_waitcnt lgkmcnt(0)
    global_load_dwordx4 v[10:13], v5, {X}
    s_mov_b32 exec_hi, -1
    s_load_dwordx4 s[36:39], {WS}, {WS_E}
    s_add_u32 s22, s34, {WS_Y}
    s_addc_u32 s23, s35, 0
    s_add_u32 s60, s34, {WS_XN}
    s_addc_u32 s61, s35, 0
    global_store_dwordx4 v7, v[36:39], {YB} sc1
    s_mov_b32 exec_hi, 0x00ffffff
    global_load_dwordx4 v[14:17], v4, {WR}
    s_mov_b32 exec_hi, -1
    s_cmp_ge_u32 s2, 224
    s_cbranch_scc1 L_pro_ffn
    """)
    a(f"""
    s_lshl_b32 {sT0}, {sPR}, 1
    s_add_u32 {sT0}, {sT0}, {sCH}
    s_lshl_b32 {sT0}, {sT0}, 9
    s_lshl_b32 {sT1}, {sQ}, 7
    s_add_u32 {sT0}, {sT0}, {sT1}
    v_lshl_add_u32 v8, v1, 1, {sT0}
    global_load_ushort v40, v8, {LOGA}
    global_load_ushort v41, v8, {AIM}
    global_load_ushort v42, v8, {CRE}
    global_load_ushort v43, v8, {CIM}
    s_lshl_b32 {sT0}, {sPR}, 2
    s_load_dword {sLD}, {LDT}, {sT0}
    """)
    a(f"""
    v_mov_b32 v44, 0
    v_mov_b32 v45, 0
    v_mov_b32 v46, 0
    v_mov_b32 v47, 0
    v_add_u32 v48, {ZB}, v6
    ds_write_b128 v48, v[44:47]
    ds_write_b128 v48, v[44:47] offset:8192
    ds_write_b128 v48, v[44:47] offset:16384
    ds_write_b128 v48, v[44:47] offset:24576
    """)
    a(f"""
    s_lshl_b32 {sT0}, {sQ}, 8
    s_sub_u32 {sT0}, 1023, {sT0}
    v_lshlrev_b32 v50, 2, v1
    v_sub_u32 v50, {sT0}, v50
    s_mul_i32 {sT1}, {sCH}, {KCS}
    s_add_u32 {sT1}, {sT1}, {KC}
    s_movk_i32 {sT2}, 0x4280
    s_movk_i32 {sT3}, 128
    """)
    for i in range(7):
        a(f"""
        v_subrev_u32 v51, {i}, v50
        v_max_i32 v52, 0, v51
        v_cvt_f32_u32 v52, v52
        v_min_i32 v51, {sT3}, v51
        v_cvt_pk_bf16_f32 v52, v52, 0
        v_subrev_u32 v52, {sT2}, v52
        v_max_i32 v51, v51, v52
        v_lshl_add_u32 v{100+i}, v51, 1, {sT1}
        """)
    a(f"""
    s_mul_i32 {sT2}, {sCH}, {TTS}
    s_add_u32 {sT2}, {sT2}, {TT}
    s_lshl_b32 {sT3}, {sQ}, 9
    s_add_u32 {sT3}, {sT3}, {sT2}
    s_add_u32 {sT3}, {sT3}, 64
    v_lshl_add_u32 v107, v1, 3, {sT3}
    v_and_b32 v2, 15, v1
    v_lshrrev_b32 v3, 4, v1
    v_add_u32 v51, v2, v3
    v_mov_b32 v52, 511
    v_cmp_gt_u32 vcc, 18, v51
    v_addc_co_u32 v52, vcc, 0, v52, vcc
    v_cmp_gt_u32 vcc, 11, v51
    v_addc_co_u32 v52, vcc, 0, v52, vcc
    v_cmp_le_u32 vcc, 4, v51
    v_cndmask_b32 v52, -1, v52, vcc
    v_lshl_add_u32 v108, v52, 1, {sT1}
    v_mul_u32_u24 v51, {TCS}, v3
    v_lshl_add_u32 v51, v2, 1, v51
    v_add3_u32 v109, v51, {sT2}, 32
    v_sub_u32 v51, 15, v2
    v_and_b32 v52, 3, v51
    v_sub_u32 v51, v51, v52
    v_lshl_add_u32 v51, v3, 3, v51
    v_mul_u32_u24 v52, {TCS}, v52
    v_lshl_add_u32 v51, v51, 1, v52
    v_add_u32 v110, {sT2}, v51
    s_mul_i32 {sT0}, {sCH}, {US}
    s_lshl_b32 {sT3}, {sQ}, 10
    s_add_u32 {sT0}, {sT0}, {sT3}
    s_add_u32 {sT0}, {sT0}, {U + 448 - 2048}
    v_lshlrev_b32 v51, 5, v2
    v_lshl_add_u32 v51, v3, 4, v51
    v_add_u32 v111, {sT0}, v51
    s_mul_i32 {sT0}, {sCH}, {CHS}
    s_lshl_b32 {sT3}, {sQ}, 8
    s_add_u32 {sT0}, {sT0}, {sT3}
    s_mov_b32 m0, {sT0}
    v_and_b32 v51, 31, v1
    v_lshrrev_b32 v52, 5, v1
    v_mul_u32_u24 v53, {RS}, v51
    v_lshl_add_u32 v53, v52, 4, v53
    v_add_u32 v112, {sT0}, v53
    v_mul_u32_u24 v53, {RS}, v3
    v_lshl_add_u32 v53, v2, 4, v53
    v_add_u32 v113, {sT0}, v53
    s_and_b32 {sT0}, {sWV}, 1
    s_lshr_b32 {sT3}, {sWV}, 1
    s_mul_i32 {sT1}, {sT0}, {CHS}
    s_mul_i32 {sT2}, {sT3}, {4*RS}
    s_add_u32 {sT1}, {sT1}, {sT2}
    v_add_u32 v114, {sT1}, v53
    s_mul_i32 {sT0}, {sT0}, {KCS}
    s_lshl_b32 {sT1}, {sT3}, 9
    s_add_u32 {sT0}, {sT0}, {sT1}
    s_add_u32 {sT0}, {sT0}, {KC}
    s_cmp_eq_u32 {sT3}, 0
    s_cselect_b32 {sT1}, 3, 8
    v_lshlrev_b32 v53, {sT1}, v52
    s_cselect_b32 {sT1}, 4, 1
    s_cselect_b32 {sT2}, 4, 128
    s_cmp_eq_u32 {sT3}, 1
    s_cselect_b32 {sT1}, 3, {sT1}
    s_cselect_b32 {sP}, 1, 0
    v_and_b32 v54, {sP}, v52
    v_sub_u32 v54, {sT1}, v54
    v_lshlrev_b32 v54, v54, v51
    v_add3_u32 v115, v53, v54, {sT0}
    s_cmp_eq_u32 {sT3}, 2
    s_cselect_b32 {sT0}, 64, 2
    s_cselect_b32 {sT1}, 128, 4
    v_mov_b32 v53, {sT1}
    v_mov_b32 v54, {sT2}
    v_cmp_eq_u32 vcc, 0, v52
    v_cndmask_b32 v53, v54, v53, vcc
    v_add_u32 v116, {sT0}, v115
    v_add_u32 v117, v53, v115
    v_add_u32 v118, {sT0}, v117
    s_branch L_ln
    """)
    a(f"""
    L_pro_ffn:
    global_load_dword v40, v3, s[4:5]
    global_load_dword v41, v3, s[4:5]
    global_load_dword v42, v3, s[4:5]
    global_load_dword v43, v3, s[4:5]
    v_and_b32 v2, 15, v1
    v_lshrrev_b32 v3, 4, v1
    """)
    a(f"""
    L_ln:
    s_mov_b32 {sHI}, 0xffff0000
    s_mul_i32 {sT0}, {sWV}, 960
    s_add_u32 {sT0}, {sT0}, {LNX}
    v_add_u32 v18, {sT0}, v4
    v_mov_b32 v44, 0
    v_mov_b32 v45, 0
    v_mov_b32 v46, 0
    v_and_b32 v50, 0x1f0, v0
    v_and_b32 v51, 3, v0
    v_lshlrev_b32 v50, 1, v50
    v_lshl_add_u32 v50, v51, 3, v50
    v_bfe_u32 v51, v0, 2, 2
    v_mul_u32_u24 v51, 960, v51
    v_add_u32 v50, v50, v51
    v_add_u32 v19, {LNX}, v50
    s_mul_i32 {sT0}, {sTB}, 7168
    v_add_u32 v49, {sT0}, v6
    s_waitcnt lgkmcnt(0)
    """)
    for i in range(4):
        a(f"s_andn2_b32 s{sMSK+i}, {TAGM}, s{36+i}\ns_sub_u32 s{sDEC+i}, {BIAS}, s{sMSK+i}")
    a("s_mov_b32 exec_hi, 0x00ffffff\ns_waitcnt vmcnt(6)")
    stamp(1)
    for i in range(4):
        a(f"v_lshlrev_b32 v{20+2*i}, 16, v{10+i}\nv_and_b32 v{21+2*i}, {sHI}, v{10+i}")
    a(f"v_readfirstlane_b32 {sP}, v20\nds_write_b128 v18, v[10:13]")
    for i in range(8): a(f"v_subrev_f32 v{28+i}, {sP}, v{20+i}")
    a(f"""
    v_add_f32 v44, v28, v29
    v_mul_f32 v45, v28, v28
    v_add_f32 v50, v30, v31
    v_mul_f32 v51, v29, v29
    v_add_f32 v52, v32, v33
    v_fmac_f32 v45, v30, v30
    v_add_f32 v53, v34, v35
    v_fmac_f32 v51, v31, v31
    v_add_f32 v44, v44, v50
    v_fmac_f32 v45, v32, v32
    v_add_f32 v52, v52, v53
    v_fmac_f32 v51, v33, v33
    v_fmac_f32 v45, v34, v34
    v_fmac_f32 v51, v35, v35
    v_add_f32 v44, v44, v52
    v_add_f32 v45, v45, v51
    s_mov_b32 exec_hi, -1
    v_permlane32_swap_b32 v44, v45
    v_add_f32 v44, v44, v45
    v_add_f32_dpp v44, v44, v44 row_ror:8 row_mask:0xf bank_mask:0xf
    v_add_f32_dpp v44, v44, v44 row_ror:4 row_mask:0xf bank_mask:0xf
    v_add_f32_dpp v44, v44, v44 row_ror:2 row_mask:0xf bank_mask:0xf
    v_add_f32_dpp v44, v44, v44 row_ror:1 row_mask:0xf bank_mask:0xf
    v_add_f32_dpp v44, v44, v44 row_bcast:15 row_mask:0xa bank_mask:0xf
    v_mul_f32 v44, {hex(f2u(1.0/448))}, v44
    v_readlane_b32 {sT0}, v44, 16
    v_readlane_b32 {sT1}, v44, 48
    v_mov_b32 v50, {sT0}
    v_fma_f32 v51, -v50, v50, {sT1}
    v_add_f32 v50, {sP}, v50
    v_max_f32 v51, 0, v51
    v_cvt_pk_bf16_f32 v50, v50, v51
    v_and_b32 v51, {sHI}, v50
    v_lshlrev_b32 v57, 16, v50
    v_add_f32 v51, {hex(f2u(1e-5))}, v51
    v_sub_f32 v20, v20, v57
    v_cvt_pk_bf16_f32 v51, 0, v51
    v_sub_f32 v21, v21, v57
    v_sqrt_f32 v51, v51
    v_sub_f32 v22, v22, v57
    v_sub_f32 v23, v23, v57
    v_cvt_pk_bf16_f32 v51, 0, v51
    v_sub_f32 v24, v24, v57
    v_rcp_f32 v58, v51
    v_sub_f32 v25, v25, v57
    v_sub_f32 v26, v26, v57
    v_sub_f32 v27, v27, v57
    v_mul_f32 v52, {hex(f2u(2.0**-68))}, v58
    """)
    for i in range(4): a(f"v_cvt_pk_bf16_f32 v{28+i}, v{20+2*i}, v{21+2*i}")
    for i in range(4): a(f"v_lshlrev_b32 v{20+2*i}, 16, v{28+i}\nv_and_b32 v{21+2*i}, {sHI}, v{28+i}")
    for i in range(8): a(f"v_mul_f32 v{20+i}, v52, v{20+i}")
    for i in range(4): a(f"v_cvt_pk_bf16_f32 v{28+i}, v{20+2*i}, v{21+2*i}")
    a(f"""
    s_mov_b32 exec_hi, 0x00ffffff
    ds_write_b128 v18, v[28:31] offset:7680
    s_mov_b32 {sT0}, {BIAS}
    """)
    for i in range(4): a(f"v_add_u32 v{32+i}, {sT0}, v{28+i}")
    a("s_waitcnt vmcnt(4)")
    for i in range(4): a(f"v_dot2c_f32_bf16 v46, v{32+i}, v{14+i}")
    a(f"""
    s_mov_b32 exec_hi, -1
    s_waitcnt lgkmcnt(0)
    s_barrier
    s_cmp_eq_u32 {sWV}, 7
    s_cbranch_scc1 L_nogran
    ds_read_b64_tr_b16 v[20:21], v19 offset:7680
    ds_read_b64_tr_b16 v[22:23], v19 offset:{7680+3840}
    L_nogran:
    v_add_f32_dpp v46, v46, v46 row_ror:8 row_mask:0xf bank_mask:0xf
    v_add_f32_dpp v46, v46, v46 row_ror:4 row_mask:0xf bank_mask:0xf
    v_add_f32_dpp v46, v46, v46 row_ror:2 row_mask:0xf bank_mask:0xf
    v_add_f32_dpp v46, v46, v46 row_ror:1 row_mask:0xf bank_mask:0xf
    s_cbranch_scc1 L_nogran2
    s_waitcnt lgkmcnt(0)
    """)
    for i in range(4): a(f"v_or_b32 v{20+i}, s{sMSK+i}, v{20+i}")
    a(f"""
    global_store_dwordx4 v49, v[20:23], {XNB} sc1
    L_nogran2:
    s_nop 0
    v_add_f32_dpp v46, v46, v46 row_bcast:15 row_mask:0xa bank_mask:0xf
    s_lshl_b32 {sT2}, {sTB}, 3
    s_add_u32 {sT2}, {sT2}, {sWV}
    v_add_f32_dpp v46, v46, v46 row_bcast:31 row_mask:0xc bank_mask:0xf
    s_lshl_b32 {sT0}, {sWV}, 4
    s_add_u32 {sT0}, {sT0}, {CANDL}
    v_cvt_pk_bf16_f32 v46, 0, v46
    v_mov_b32 v50, {sT0}
    v_or_b32 v56, {sT2}, v46
    s_not_b32 {sT1}, s39
    v_mov_b32 v59, {sT1}
    s_mov_b32 exec_lo, 0
    s_mov_b32 exec_hi, 0x80000000
    ds_write_b128 v50, v[56:59]
    s_mov_b64 exec, -1
    s_waitcnt lgkmcnt(0)
    s_barrier
    """)
    stamp(2)
    a(f"""
    s_cmp_lg_u32 {sWV}, 7
    s_cbranch_scc1 L_nocand
    v_and_b32 v50, 7, v1
    v_lshlrev_b32 v50, 4, v50
    v_add_u32 v50, {CANDL}, v50
    ds_read_b128 v[56:59], v50
    s_lshl_b32 {sT0}, {sTB}, 4
    s_add_u32 {sT0}, {sT0}, {WS_CAND}
    v_mov_b32 v51, {sT0}
    s_waitcnt lgkmcnt(0)
    v_max_f32_dpp v50, v56, v56 row_ror:4 row_mask:0xf bank_mask:0xf
    v_max_f32_dpp v50, v50, v50 row_ror:2 row_mask:0xf bank_mask:0xf
    v_max_f32_dpp v50, v50, v50 row_ror:1 row_mask:0xf bank_mask:0xf
    v_cmp_eq_u32 vcc, v50, v56
    s_and_b32 exec_lo, vcc_lo, 0xff
    s_mov_b32 exec_hi, 0
    global_store_dwordx4 v51, v[56:59], {WS} sc1
    s_mov_b64 exec, -1
    L_nocand:
    s_cmp_ge_u32 s2, 224
    s_cbranch_scc1 L_ffn
    """)
    LOG2E = hex(f2u(1.4426950408889634))
    a(f"""
    s_lshl_b32 {sT0}, {sLD}, 16
    s_and_b32 {sT1}, {sLD}, {sHI}
    s_cmp_eq_u32 {sCH}, 0
    s_cselect_b32 {sT0}, {sT0}, {sT1}
    s_mov_b32 {sT1}, {LOG2E}
    v_mov_b32 v50, {sT0}
    v_mul_f32 v50, {sT1}, v50
    s_waitcnt vmcnt(1)
    v_lshlrev_b32 v40, 16, v40
    v_exp_f32 v50, v50
    v_mul_f32 v40, {sT1}, v40
    v_lshlrev_b32 v41, 16, v41
    v_exp_f32 v40, v40
    v_cvt_pk_bf16_f32 v50, 0, v50
    v_lshlrev_b32 v42, 16, v42
    v_lshlrev_b32 v43, 16, v43
    v_cvt_pk_bf16_f32 v40, 0, v40
    v_mul_f32 v41, v50, v41
    v_add_f32 v51, v50, v50
    v_mul_f32 v40, v50, v40
    v_mul_f32 v41, 0.15915494, v41
    v_mul_f32 v40, {hex(f2u(-1.4426950408889634))}, v40
    v_mul_f32 v42, v51, v42
    v_mul_f32 v43, v51, v43
    """)
    for (p, r, t) in ((1, 60, 20), (8, 63, 24), (128, 66, 28)):
        if p == 1: a(f"v_exp_f32 v{t}, v40\nv_fract_f32 v{t+1}, v41")
        else: a(f"v_mul_f32 v{t}, {hex(f2u(p))}, v40\nv_mul_f32 v{t+1}, {hex(f2u(p))}, v41\nv_exp_f32 v{t}, v{t}\nv_fract_f32 v{t+1}, v{t+1}")
    for (p, r, t) in ((1, 60, 20), (8, 63, 24), (128, 66, 28)):
        a(f"v_cos_f32 v{t+2}, v{t+1}\nv_sin_f32 v{t+3}, v{t+1}")
    for (p, r, t) in ((1, 60, 20), (8, 63, 24), (128, 66, 28)):
        a(f"v_mul_f32 v{r}, v{t}, v{t+2}\nv_mul_f32 v{r+1}, v{t}, v{t+3}")
    for r in (60, 63, 66): a(f"v_sub_f32 v{r+2}, 0, v{r+1}")
    tmp = [0]
    def put(row, re, im, conj):
        t = 52 + tmp[0] % 4; tmp[0] += 1
        return [f"v_cvt_pk_bf16_f32 v{t}, v{re}, {'-' if conj else ''}v{im}", f"ds_write_addtid_b32 v{t} offset:{row*RS}"]
    def cmul(d, x, w):
        return [f"v_mul_f32 v{d}, v{x}, v{w}", f"v_mul_f32 v{d+1}, v{x}, v{w+1}",
                f"v_fmac_f32 v{d}, v{x+1}, v{w+2}", f"v_fmac_f32 v{d+1}, v{x+1}, v{w}"]
    def inter(x, y):
        for i in range(max(len(x), len(y))):
            if i < len(x): a(x[i])
            if i < len(y): a(y[i])
    G0 = 21
    inter(cmul(69, 66, 66) + ["v_sub_f32 v71, 0, v70"], cmul(72, 60, 60) + ["v_sub_f32 v74, 0, v73"])
    inter(cmul(75, 72, 72) + ["v_sub_f32 v77, 0, v76"], ["v_mov_b32 v51, 0x3f80", f"ds_write_addtid_b32 v51 offset:{G0*RS}"] + put(0, 42, 43, True))
    inter(put(G0 + 1, 63, 64, False), put(G0 + 16, 66, 67, False))
    ga = []; src = 63
    for j in range(2, 16):
        d = 20 + 2 * (j & 1); ga.append((d, src, 63, G0 + j, False)); src = d
    gb = []; src = 66
    for j in range(17, 32):
        d = 24 + 2 * (j & 1); gb.append((d, src, 63, G0 + j, False)); src = d
    fa = []; src = 42
    for h in range(1, 8):
        d = 28 + 2 * (h & 1); fa.append((d, src, 60, h, True)); src = d
    fb = [(80, 42, 69, 8, True), (82, 80, 69, 12, True), (84, 82, 69, 14, True)]
    src = 84
    for k in range(5):
        d = 32 + 2 * (k & 1); fb.append((d, src, 69, 16 + k, True)); src = d
    fc = [(28, 80, 72, 9, True), (30, 28, 72, 10, True), (28, 30, 72, 11, True), (30, 82, 75, 13, True), (28, 84, 75, 15, True)]
    A_ = ga + fa + fc[:3]
    B_ = fb + gb + [(32, 82, 75, 13, True), (34, 84, 75, 15, True)]
    for i in range(max(len(A_), len(B_))):
        xs = []
        for L in (A_, B_):
            if i < len(L):
                d, s_, w, row, cj = L[i]
                xs.append(cmul(d, s_, w) + put(row, d, d + 1, cj))
            else: xs.append([])
        inter(xs[0], xs[1])
    stamp(3)
    for st in range(8):
        a(f"ds_read_b128 v[{120+8*st}:{123+8*st}], v112 offset:{32*st}")
        a(f"ds_read_b128 v[{124+8*st}:{127+8*st}], v112 offset:{G0*RS+32*st}")
        if st >= 4:
            s2_ = st - 4
            a(f"s_waitcnt lgkmcnt(8)")
            a(f"v_mfma_f32_32x32x16_bf16 v[20:35], v[{120+8*s2_}:{123+8*s2_}], v[{124+8*s2_}:{127+8*s2_}], {'0' if s2_==0 else 'v[20:35]'}")
    for s2_ in range(4, 8):
        a(f"s_waitcnt lgkmcnt({2*(7-s2_)})")
        a(f"v_mfma_f32_32x32x16_bf16 v[20:35], v[{120+8*s2_}:{123+8*s2_}], v[{124+8*s2_}:{127+8*s2_}], v[20:35]")
    for s_ in range(3): a(f"ds_write_b128 v113, v[{20+4*s_}:{23+4*s_}] offset:{4*RS*s_}")
    a(f"""
    s_waitcnt lgkmcnt(0)
    s_barrier
    s_cmp_ge_u32 {sWV}, 6
    s_cbranch_scc1 L_noR
    """)
    for nq in range(4): a(f"ds_read_b128 v[{20+4*nq}:{23+4*nq}], v114 offset:{256*nq}")
    a("s_waitcnt lgkmcnt(2)")
    for i in range(4): a(f"v_add_f32 v{20+i}, v{20+i}, v{24+i}")
    a("s_waitcnt lgkmcnt(0)")
    for i in range(4): a(f"v_add_f32 v{28+i}, v{28+i}, v{32+i}")
    for i in range(4): a(f"v_add_f32 v{20+i}, v{20+i}, v{28+i}")
    a(f"""
    v_cvt_pk_bf16_f32 v20, v20, v21
    v_cvt_pk_bf16_f32 v22, v22, v23
    ds_write_b16 v115, v20
    ds_write_b16_d16_hi v116, v20
    ds_write_b16 v117, v22
    ds_write_b16_d16_hi v118, v22
    s_waitcnt lgkmcnt(0)
    L_noR:
    s_barrier
    """)
    for i in range(7): a(f"ds_read_u16 v{20+i}, v{100+i}")
    a(f"""
    ds_read_u16 v27, v108
    s_waitcnt lgkmcnt(4)
    v_lshl_or_b32 v28, v21, 16, v20
    v_lshl_or_b32 v29, v23, 16, v22
    v_lshl_or_b32 v30, v22, 16, v21
    v_lshl_or_b32 v32, v23, 16, v22
    ds_write_b64 v107, v[28:29]
    s_waitcnt lgkmcnt(2)
    v_lshl_or_b32 v31, v24, 16, v23
    v_lshl_or_b32 v33, v25, 16, v24
    v_lshl_or_b32 v34, v24, 16, v23
    v_lshl_or_b32 v35, v26, 16, v25
    ds_write_b64 v107, v[30:31] offset:{TCS}
    ds_write_b64 v107, v[32:33] offset:{2*TCS}
    ds_write_b64 v107, v[34:35] offset:{3*TCS}
    s_waitcnt lgkmcnt(4)
    ds_write_b16 v109, v27
    v_lshrrev_b32 v52, 1, v0
    v_and_b32 v53, 1, v0
    v_mul_u32_u24 v50, 7168, v52
    v_lshl_add_u32 v50, v53, 4, v50
    s_lshl_b32 {sT0}, {sPR}, 5
    v_add_u32 v50, {sT0}, v50
    v_mul_u32_u24 v51, {US}, v53
    v_lshl_add_u32 v51, v52, 4, v51
    v_add_u32 v51, {U+480}, v51
    s_waitcnt lgkmcnt(0)
    s_barrier
    """)
    stamp(4)
    a(f"global_load_dwordx4 v[20:23], v50, {XNB} sc1")
    AF = 120
    def aload(m):
        a(f"ds_read_b64 v[{AF+4*m}:{AF+4*m+1}], v110 offset:{64*(32-m)}\nds_read_b64 v[{AF+4*m+2}:{AF+4*m+3}], v110 offset:{64*(32-m)+8}")
    for m in range(16): aload(m)
    a(f"s_cmp_eq_u32 {sQ}, 0\ns_cbranch_scc1 L_aq0")
    for m in range(16, 33): aload(m)
    a("s_branch L_adone\nL_aq0:")
    a(f"""
    s_mul_i32 {sT0}, {sCH}, {KCS}
    s_add_u32 {sT0}, {sT0}, {KC + 1024 + 4*(64-63-3)}
    v_lshlrev_b32 v52, 2, v3
    v_sub_u32 v52, v2, v52
    v_lshl_add_u32 v53, v52, 2, {sT0}
    """)
    for mu in range(4):
        a(f"ds_read2_b32 v[{184+4*mu}:{185+4*mu}], v53 offset0:{16*mu+3} offset1:{16*mu+2}")
        a(f"ds_read2_b32 v[{186+4*mu}:{187+4*mu}], v53 offset0:{16*mu+1} offset1:{16*mu}")
    a(f"""
    v_lshlrev_b32 v54, 3, v3
    v_sub_u32 v54, v2, v54
    v_mov_b32 v55, 0x3f80
    v_mov_b32 v56, 0x3f800000
    """)
    for dw in range(4):
        for (dst, lo, n) in ((200 + dw, -4, 9), (204 + dw, 5, 7)):
            a(f"""
            v_add_u32 v57, {12 - 2*dw - lo}, v54
            v_add_u32 v58, {12 - 2*dw - 1 - lo}, v54
            v_cmp_gt_u32 vcc, {n}, v57
            v_cmp_gt_u32 s[62:63], {n}, v58
            v_cndmask_b32 v57, 0, v55, vcc
            v_cndmask_b32 v58, 0, v56, s[62:63]
            v_or_b32 v{dst}, v57, v58
            """)
    a("s_waitcnt lgkmcnt(0)")
    for r in range(4):
        a(f"v_cmp_le_i32 vcc, {r}, v52\nv_cndmask_b32 v{184+r}, 0, v{184+r}, vcc")
    a(f"""
    L_adone:
    s_mov_b32 {sCNT}, 0
    s_mov_b32 {sT0}, {TAGM}
    L_poll1:
    s_waitcnt vmcnt(0)
    v_xor_b32 v24, s{sMSK}, v20
    v_bitop3_b32 v24, v24, v21, s{sMSK+1} bitop3:0xf6
    v_bitop3_b32 v24, v24, v22, s{sMSK+2} bitop3:0xf6
    v_bitop3_b32 v24, v24, v23, s{sMSK+3} bitop3:0xf6
    v_and_b32 v24, {sT0}, v24
    v_cmp_ne_u32 vcc, 0, v24
    s_add_u32 {sCNT}, {sCNT}, 1
    s_cbranch_vccz L_poll1_done
    s_cmp_ge_u32 {sCNT}, {SPIN}
    s_cbranch_scc1 L_poll1_done
    s_mov_b64 exec, vcc
    global_load_dwordx4 v[20:23], v50, {XNB} sc1
    s_branch L_poll1
    L_poll1_done:
    s_mov_b64 exec, -1
    """)
    for i in range(4): a(f"v_add_u32 v{20+i}, s{sDEC+i}, v{20+i}")
    a(f"""
    ds_write_b128 v51, v[20:23]
    s_waitcnt lgkmcnt(0)
    s_barrier
    """)
    stamp(5)
    NB = 6; BF = 60
    UP = "v[20:23]"; LO = "v[24:27]"
    def bload(mp): a(f"ds_read_b128 v[{BF+4*(mp%NB)}:{BF+4*(mp%NB)+3}], v111 offset:{64*(40-mp)}")
    for mp in range(NB - 1): bload(mp)
    a(f"""
    s_or_b32 {sT0}, s2, {sWV}
    s_cmp_lg_u32 {sT0}, 0
    s_cbranch_scc1 L_noE
    v_not_b32 v28, s36
    v_not_b32 v29, s37
    v_not_b32 v30, s38
    v_not_b32 v31, s39
    v_mov_b32 v32, {WS_E}
    s_mov_b64 exec, 1
    global_store_dwordx4 v32, v[28:31], {WS} sc1
    s_mov_b64 exec, -1
    L_noE:
    """)
    for mp in range(41):
        if mp == 16: a(f"s_cmp_eq_u32 {sQ}, 0\ns_cbranch_scc1 L_seg3")
        if mp == 32: a(f"s_cmp_eq_u32 {sQ}, 1\ns_cbranch_scc1 L_convdone")
        if mp + NB - 1 <= 40:
            bload(mp + NB - 1); a(f"s_waitcnt lgkmcnt({NB-1})")
        else: a(f"s_waitcnt lgkmcnt({40-mp})")
        b = f"v[{BF+4*(mp%NB)}:{BF+4*(mp%NB)+3}]"
        if mp <= 32: a(f"v_mfma_f32_16x16x32_bf16 {UP}, v[{AF+4*mp}:{AF+4*mp+3}], {b}, {'0' if mp==0 else UP}")
        if mp >= 8: a(f"v_mfma_f32_16x16x32_bf16 {LO}, v[{AF+4*(mp-8)}:{AF+4*(mp-8)+3}], {b}, {'0' if mp==8 else LO}")
    a("s_branch L_convdone\nL_seg3:")
    o3 = 2048 - 448 + 480 - 56
    a("s_waitcnt lgkmcnt(0)")
    for nu in range(4):
        a(f"ds_read_b64 v[{60+4*nu}:{61+4*nu}], v111 offset:{o3+512*nu}\nds_read_b64 v[{62+4*nu}:{63+4*nu}], v111 offset:{o3+512*nu+8}")
    for nu in range(4):
        a(f"s_waitcnt lgkmcnt({6-2*nu})")
        a(f"v_mfma_f32_16x16x32_bf16 v[{208+8*nu}:{211+8*nu}], v[{60+4*nu}:{63+4*nu}], v[200:203], 0")
        a(f"v_mfma_f32_16x16x32_bf16 v[{212+8*nu}:{215+8*nu}], v[{60+4*nu}:{63+4*nu}], v[204:207], 0")
    for nu in range(4):
        for r in range(4): a(f"v_cvt_pk_bf16_f32 v{76+4*nu+r}, v{208+8*nu+r}, v{212+8*nu+r}")
        for mu in range(4 - nu):
            c = nu + mu
            a(f"v_mfma_f32_16x16x32_bf16 v[{28+4*c}:{31+4*c}], v[{76+4*nu}:{79+4*nu}], v[{184+4*mu}:{187+4*mu}], {'0' if nu==0 else f'v[{28+4*c}:{31+4*c}]'}")
    def yaddr(dst):
        a(f"""
        v_lshlrev_b32 v52, 2, v3
        v_and_b32 v52, 8, v52
        v_or_b32 v52, {sCH}, v52
        v_xor_b32 v52, v2, v52
        v_lshlrev_b32 v52, 4, v52
        v_lshl_add_u32 v{dst}, v3, 8, v52
        """)
    yaddr(53)
    a(f"s_lshl_b32 {sT0}, {sCH}, 12\nv_add_u32 v53, {sT0}, v53")
    for c in range(4): a(f"ds_write_b128 v53, v[{28+4*c}:{31+4*c}] offset:{YP+1024*c}")
    a("L_convdone:")
    yaddr(53)
    a(f"""
    s_lshl_b32 {sT0}, {sCH}, 13
    s_lshl_b32 {sT1}, {sQ}, 11
    s_add_u32 {sT0}, {sT0}, {sT1}
    v_add_u32 v53, {sT0}, v53
    v_and_b32 v54, 1, v1
    v_lshrrev_b32 v55, 2, v1
    v_bfe_u32 v56, v1, 1, 1
    v_lshl_or_b32 v57, v56, 3, v54
    v_xor_b32 v55, v55, v57
    v_lshlrev_b32 v55, 4, v55
    v_lshl_add_u32 v55, v56, 9, v55
    s_lshl_b32 {sT0}, {sWV}, 10
    v_add_u32 v55, {sT0}, v55
    v_lshl_add_u32 v56, v54, 12, v55
    v_lshl_add_u32 v55, v54, 13, v55
    s_nop 1
    ds_write_b128 v53, {UP} offset:{YL+1024}
    ds_write_b128 v53, {LO} offset:{YL}
    s_waitcnt lgkmcnt(0)
    s_barrier
    """)
    stamp(6)
    a(f"""
    ds_read_b128 v[20:23], v55 offset:{YL}
    ds_read_b128 v[24:27], v55 offset:{YL+256}
    s_cmp_lt_u32 {sWV}, 4
    s_cbranch_scc1 L_nopart
    ds_read_b128 v[28:31], v56 offset:{YP-4096}
    ds_read_b128 v[32:35], v56 offset:{YP-4096+256}
    s_waitcnt lgkmcnt(0)
    """)
    for i in range(8): a(f"v_add_f32 v{20+i}, v{20+i}, v{28+i}")
    a("L_nopart:\ns_waitcnt lgkmcnt(0)")
    for i in range(4): a(f"v_cvt_pk_bf16_f32 v{28+i}, v{20+2*i}, v{21+2*i}")
    a(f"global_store_dwordx4 v7, v[28:31], {YB} sc1")
    stamp(7)
    a(f"""
    L_epi:
    s_cmp_eq_u32 {sWV}, 7
    s_cbranch_scc1 L_fin
    v_lshlrev_b32 v50, 1, v0
    global_load_ushort v40, v50, {DSK}
    ds_read_b64_tr_b16 v[60:61], v19
    ds_read_b64_tr_b16 v[62:63], v19 offset:3840
    ds_read_b64_tr_b16 v[64:65], v19 offset:7680
    ds_read_b64_tr_b16 v[66:67], v19 offset:{7680+3840}
    v_lshrrev_b32 v52, 1, v0
    v_and_b32 v53, 1, v0
    v_lshlrev_b32 v52, 13, v52
    v_lshl_add_u32 v52, v53, 4, v52
    s_lshl_b32 {sT0}, {sTB}, 5
    v_add_u32 v52, {sT0}, v52
    v_mov_b32 v53, {Y_IDX}
    s_mul_i32 {sT0}, {sTB}, 7168
    s_add_u32 {sT0}, {sT0}, 3584
    v_add_u32 v50, {sT0}, v50
    s_mov_b32 {sT1}, {BIAS}
    s_waitcnt lgkmcnt(0)
    """)
    for i in range(4):
        a(f"v_add_u32 v{64+i}, {sT1}, v{64+i}\nv_lshlrev_b32 v{70+2*i}, 16, v{60+i}\nv_and_b32 v{71+2*i}, {sHI}, v{60+i}")
    for i in range(4): a(f"v_lshlrev_b32 v{80+2*i}, 16, v{64+i}\nv_and_b32 v{81+2*i}, {sHI}, v{64+i}")
    a("s_waitcnt vmcnt(0)\nv_lshlrev_b32 v40, 16, v40")
    a(f"global_load_dwordx4 v[20:23], v52, {YB} sc1\nglobal_load_dword v24, v53, {YB} sc1")
    for i in range(8): a(f"v_mul_f32 v{90+i}, v40, v{80+i}")
    for i in range(4): a(f"v_cvt_pk_bf16_f32 v{60+i}, v{90+2*i}, v{91+2*i}")
    for i in range(4): a(f"v_lshlrev_b32 v{90+2*i}, 16, v{60+i}\nv_and_b32 v{91+2*i}, {sHI}, v{60+i}")
    a(f"""
    s_mov_b32 {sCNT}, 0
    L_poll2:
    s_waitcnt vmcnt(0)
    v_max3_u32 v25, v20, v21, v22
    v_max3_u32 v25, v25, v23, v24
    v_cmp_eq_u32 vcc, -1, v25
    s_add_u32 {sCNT}, {sCNT}, 1
    s_cbranch_vccz L_poll2_done
    s_cmp_ge_u32 {sCNT}, {SPIN}
    s_cbranch_scc1 L_poll2_done
    s_mov_b64 exec, vcc
    global_load_dwordx4 v[20:23], v52, {YB} sc1
    global_load_dword v24, v53, {YB} sc1
    s_branch L_poll2
    L_poll2_done:
    s_mov_b64 exec, -1
    """)
    stamp(8)
    a(f"v_readfirstlane_b32 {sIDX}, v24")
    for i in range(4): a(f"v_lshlrev_b32 v{28+2*i}, 16, v{20+i}\nv_and_b32 v{29+2*i}, {sHI}, v{20+i}")
    for base in (90, 70):
        for i in range(8): a(f"v_add_f32 v{28+i}, v{28+i}, v{base+i}")
        for i in range(4): a(f"v_cvt_pk_bf16_f32 v{20+i}, v{28+2*i}, v{29+2*i}")
        for i in range(4): a(f"v_lshlrev_b32 v{28+2*i}, 16, v{20+i}\nv_and_b32 v{29+2*i}, {sHI}, v{20+i}")
    for i in range(8): a(f"v_add_f32 v{28+i}, v{28+i}, v{80+i}")
    for i in range(4): a(f"v_cvt_pk_bf16_f32 v{20+i}, v{28+2*i}, v{29+2*i}")
    a(f"s_lshl_b32 {sT0}, {sTB}, 3\ns_sub_u32 {sT0}, {sIDX}, {sT0}")
    for r in range(8):
        a(f"s_cmp_eq_u32 {sT0}, {r}\ns_cbranch_scc1 L_sk{r}")
        a(f"global_store_short{'_d16_hi' if r & 1 else ''} v50, v{20+r//2}, {OUT} offset:{896*(r-4)}")
        a(f"L_sk{r}:")
    a("s_branch L_fin")
    def perms(src, dst):
        for kp in range(4):
            for dw in range(4):
                a(f"v_perm_b32 v{dst+4*(2*dw)+kp}, v{src+4*(2*kp+1)+dw}, v{src+4*(2*kp)+dw}, {sT2}")
                a(f"v_perm_b32 v{dst+4*(2*dw+1)+kp}, v{src+4*(2*kp+1)+dw}, v{src+4*(2*kp)+dw}, {sT3}")
    def gemv(afrag, w, acc, res):
        for e in range(8): a(f"v_mfma_f32_16x16x32_bf16 v[{acc+4*e}:{acc+4*e+3}], v[{afrag}:{afrag+3}], v[{w+4*e}:{w+4*e+3}], 0")
    def fold(acc, res):
        for e in range(4): a(f"v_add_f32_dpp v{res+e}, v{acc+4*e+1}, v{acc+4*e} row_shl:8 row_mask:0xf bank_mask:0x3")
        for e in range(4, 8): a(f"v_add_f32_dpp v{res+e-4}, v{acc+4*e}, v{acc+4*e+1} row_shr:8 row_mask:0xf bank_mask:0xc")
    a(f"""
    L_ffn:
    s_cmp_eq_u32 {sWV}, 7
    s_cbranch_scc1 L_ffn7
    s_cmp_ge_u32 {sFI}, 28
    s_cbranch_scc1 L_spare
    v_lshrrev_b32 v50, 3, v2
    v_lshl_add_u32 v50, v50, 2, v3
    v_and_b32 v51, 7, v2
    v_lshlrev_b32 v51, 4, v51
    s_movk_i32 {sT0}, {8*3584}
    v_mad_u32_u24 v52, v50, {sT0}, v51
    s_mul_i32 {sT0}, {sWV}, {64*3584}
    s_lshl_b32 {sT1}, {sFI}, 7
    s_add_u32 {sT0}, {sT0}, {sT1}
    s_add_u32 {sT0}, {sT0}, 3584
    v_add_u32 v52, {sT0}, v52
    v_add_u32 v53, {3*3584}, v52
    v_add_u32 v54, {6*3584}, v52
    s_movk_i32 {sT0}, {8*896}
    v_mad_u32_u24 v55, v50, {sT0}, v51
    s_mul_i32 {sT0}, {sFI}, {64*896}
    s_lshl_b32 {sT1}, {sWV}, 7
    s_add_u32 {sT0}, {sT0}, {sT1}
    s_add_u32 {sT0}, {sT0}, 3584
    v_add_u32 v55, {sT0}, v55
    """)
    for (base, ptr) in ((60, WG_), (92, WU)):
        for e in range(8): a(f"global_load_dwordx4 v[{base+4*e}:{base+4*e+3}], v{52+e//3}, {ptr} offset:{3584*(e%3-1)}")
    for e in range(8): a(f"global_load_dwordx4 v[{124+4*e}:{127+4*e}], v55, {WD} offset:{896*(e-4)}")
    a(f"""
    s_mov_b32 {sT2}, 0x05040100
    s_mov_b32 {sT3}, 0x07060302
    v_and_b32 v50, 1, v2
    v_lshlrev_b32 v50, 6, v50
    v_lshl_add_u32 v50, v3, 4, v50
    s_lshl_b32 {sT0}, {sWV}, 7
    v_add_u32 v50, {sT0}, v50
    v_lshrrev_b32 v56, 3, v2
    v_lshlrev_b32 v56, 4, v56
    v_lshl_add_u32 v56, v51, 1, v56
    s_lshl_b32 {sT1}, {sWV}, 9
    v_add_u32 v56, {sT1}, v56
    v_lshlrev_b32 v57, 2, v1
    v_lshl_add_u32 v58, v1, 1, {sT0}
    s_lshl_b32 {sT0}, s2, 13
    s_lshl_b32 {sT1}, {sWV}, 8
    s_add_u32 {sT0}, {sT0}, {sT1}
    v_add_u32 v59, {sT0}, v4
    s_waitcnt vmcnt(16)
    """)
    perms(60, 156); a("s_waitcnt vmcnt(8)"); perms(92, 188); a("s_waitcnt vmcnt(0)"); perms(124, 220)
    stamp(3)
    a(f"""
    s_barrier
    ds_read_b128 v[20:23], v50 offset:{FXN}
    s_waitcnt lgkmcnt(0)
    """)
    stamp(5)
    gemv(20, 156, 60, 0); gemv(20, 188, 92, 0)
    fold(60, 24); fold(92, 28)
    a(f"""
    s_mov_b64 exec, 0xffff
    ds_write_b128 v56, v[24:27] offset:{FGP}
    ds_write_b128 v56, v[28:31] offset:{FGP+256}
    s_mov_b64 exec, -1
    s_waitcnt lgkmcnt(0)
    s_barrier
    """)
    for p in range(7): a(f"ds_read2st64_b32 v[{24+2*p}:{25+2*p}], v57 offset0:{FGP//256+2*p} offset1:{FGP//256+2*p+1}")
    a(f"""
    s_waitcnt lgkmcnt(0)
    v_add_f32 v24, v24, v26
    v_add_f32 v25, v25, v27
    v_add_f32 v28, v28, v30
    v_add_f32 v29, v29, v31
    v_add_f32 v32, v32, v34
    v_add_f32 v33, v33, v35
    v_add_f32 v24, v24, v28
    v_add_f32 v25, v25, v29
    v_add_f32 v32, v32, v36
    v_add_f32 v33, v33, v37
    v_add_f32 v24, v24, v32
    v_add_f32 v25, v25, v33
    v_cvt_pk_bf16_f32 v24, v24, v25
    v_lshlrev_b32 v26, 16, v24
    v_and_b32 v25, {sHI}, v24
    v_mul_f32 v27, {hex(f2u(-1.4426950408889634))}, v26
    v_exp_f32 v27, v27
    v_add_f32 v27, 1.0, v27
    v_rcp_f32 v27, v27
    v_mul_f32 v26, v26, v27
    v_cvt_pk_bf16_f32 v26, 0, v26
    v_mul_f32 v26, v26, v25
    v_cvt_pk_bf16_f32 v26, v26, v26
    ds_write_b16 v58, v26 offset:{FH}
    ds_read_b128 v[20:23], v50 offset:{FH}
    s_waitcnt lgkmcnt(0)
    """)
    gemv(20, 220, 60, 0); fold(60, 24)
    a(f"""
    s_mov_b64 exec, 0xffff
    global_store_dwordx4 v59, v[24:27], {YB} sc1
    s_mov_b64 exec, -1
    """)
    stamp(7)
    a(f"""
    s_branch L_epi
    L_spare:
    s_barrier
    s_branch L_epi
    L_ffn7:
    v_add_u32 v50, {WS_CAND}, v4
    s_not_b32 {sT3}, s39
    s_mov_b32 {sCNT}, 0
    s_waitcnt vmcnt(0)
    L_poll3:
    """)
    for i in range(4): a(f"global_load_dwordx4 v[{20+4*i}:{23+4*i}], v50, {WS} offset:{1024*i} sc1")
    a(f"""
    s_waitcnt vmcnt(0)
    v_xor_b32 v51, {sT3}, v23
    v_bitop3_b32 v51, v51, v27, {sT3} bitop3:0xf6
    v_bitop3_b32 v51, v51, v31, {sT3} bitop3:0xf6
    v_bitop3_b32 v51, v51, v35, {sT3} bitop3:0xf6
    v_cmp_ne_u32 vcc, 0, v51
    s_add_u32 {sCNT}, {sCNT}, 1
    s_cmp_ge_u32 {sCNT}, {SPIN}
    s_cbranch_scc1 L_poll3_done
    s_mov_b64 exec, vcc
    s_cbranch_execnz L_poll3
    L_poll3_done:
    s_mov_b64 exec, -1
    """)
    stamp(3)
    a(f"""
    s_cmp_ge_u32 {sFI}, 28
    s_cbranch_scc1 L_spare7
    v_max3_f32 v51, v20, v24, v28
    v_max_f32 v51, v51, v32
    v_cmp_eq_u32 vcc, v51, v24
    v_max_f32_dpp v52, v51, v51 row_ror:8 row_mask:0xf bank_mask:0xf
    v_cmp_eq_u32 s[62:63], v51, v28
    v_cndmask_b32 v21, v21, v25, vcc
    v_max_f32_dpp v52, v52, v52 row_ror:4 row_mask:0xf bank_mask:0xf
    v_cndmask_b32 v22, v22, v26, vcc
    v_cmp_eq_u32 vcc, v51, v32
    v_max_f32_dpp v52, v52, v52 row_ror:2 row_mask:0xf bank_mask:0xf
    v_cndmask_b32 v21, v21, v29, s[62:63]
    v_cndmask_b32 v22, v22, v30, s[62:63]
    v_max_f32_dpp v52, v52, v52 row_ror:1 row_mask:0xf bank_mask:0xf
    v_cndmask_b32 v21, v21, v33, vcc
    v_cndmask_b32 v22, v22, v34, vcc
    v_max_f32_dpp v52, v52, v52 row_bcast:15 row_mask:0xa bank_mask:0xf
    v_max_f32_dpp v52, v52, v52 row_bcast:31 row_mask:0xc bank_mask:0xf
    v_readlane_b32 {sP}, v52, 63
    s_and_b32 {sIDX}, {sP}, 0x7ff
    s_mul_i32 {sT0}, {sIDX}, 896
    v_add_u32 v53, {sT0}, v4
    s_mov_b32 exec_hi, 0x00ffffff
    global_load_dwordx4 v[10:13], v53, {X}
    s_mov_b32 exec_hi, -1
    v_cmp_eq_u32 vcc, {sP}, v51
    s_ff1_i32_b64 {sT1}, vcc
    s_and_b32 {sT1}, {sT1}, 63
    v_readlane_b32 {sT2}, v21, {sT1}
    v_readlane_b32 {sT3}, v22, {sT1}
    s_cmp_lg_u32 {sFI}, 0
    s_cbranch_scc1 L_noidx
    v_mov_b32 v54, {Y_IDX}
    v_mov_b32 v55, {sIDX}
    s_mov_b64 exec, 1
    global_store_dword v54, v55, {YB} sc1
    s_mov_b64 exec, -1
    s_waitcnt vmcnt(1)
    s_branch L_idx2
    L_noidx:
    s_waitcnt vmcnt(0)
    L_idx2:
    """)
    stamp(4)
    for i in range(4): a(f"v_lshlrev_b32 v{20+2*i}, 16, v{10+i}\nv_and_b32 v{21+2*i}, {sHI}, v{10+i}")
    for i in range(8): a(f"v_subrev_f32 v{20+i}, {sT2}, v{20+i}")
    for i in range(4): a(f"v_cvt_pk_bf16_f32 v{28+i}, v{20+2*i}, v{21+2*i}")
    for i in range(4): a(f"v_lshlrev_b32 v{20+2*i}, 16, v{28+i}\nv_and_b32 v{21+2*i}, {sHI}, v{28+i}")
    for i in range(8): a(f"v_mul_f32 v{20+i}, {sT3}, v{20+i}")
    for i in range(4): a(f"v_cvt_pk_bf16_f32 v{28+i}, v{20+2*i}, v{21+2*i}")
    a(f"""
    ds_write_b128 v4, v[28:31] offset:{FXN}
    ds_write_b128 v4, v[10:13] offset:{FXR}
    s_waitcnt lgkmcnt(0)
    s_barrier
    s_and_b32 {sT1}, {sFI}, 3
    s_lshl_b32 {sT1}, {sT1}, 2
    v_lshrrev_b32 v50, 2, v2
    v_add_u32 v50, {sT1}, v50
    v_and_b32 v51, 7, v50
    v_lshrrev_b32 v50, 3, v50
    v_lshlrev_b32 v51, 3, v51
    v_lshl_add_u32 v50, v50, 2, v51
    v_and_b32 v51, 3, v2
    s_lshr_b32 {sT1}, {sFI}, 2
    s_lshl_b32 {sT1}, {sT1}, 6
    v_add3_u32 v50, v50, v51, {sT1}
    v_lshlrev_b32 v51, 1, v50
    global_load_ushort v40, v51, {DSK}
    ds_read_u16 v41, v51 offset:{FXN}
    ds_read_u16 v42, v51 offset:{FXR}
    v_add_u32 v53, {sT0}, v51
    v_lshrrev_b32 v52, 1, v50
    v_and_b32 v50, 1, v50
    v_lshlrev_b32 v52, 13, v52
    v_lshl_add_u32 v52, v50, 4, v52
    s_lshr_b32 {sT1}, {sIDX}, 3
    s_lshl_b32 {sT1}, {sT1}, 5
    s_and_b32 {sT2}, {sIDX}, 6
    s_lshl_b32 {sT2}, {sT2}, 1
    s_add_u32 {sT1}, {sT1}, {sT2}
    v_add_u32 v52, {sT1}, v52
    v_lshlrev_b32 v54, 13, v3
    v_lshl_add_u32 v54, v2, 2, v54
    s_lshl_b32 {sT1}, {sFI}, 6
    s_add_u32 {sT1}, {sT1}, {Y_PART}
    v_add_u32 v54, {sT1}, v54
    """)
    for p in range(1, 7): a(f"v_add_u32 v{54+p}, {32768*p}, v54")
    a(f"""
    s_and_b32 {sT1}, {sP}, {sHI}
    v_mov_b32 v43, {sT1}
    v_mul_f32 v43, {hex(f2u(-1.4426950408889634))}, v43
    v_exp_f32 v43, v43
    v_add_f32 v43, 1.0, v43
    v_rcp_f32 v43, v43
    v_cvt_pk_bf16_f32 v43, 0, v43
    s_waitcnt vmcnt(0) lgkmcnt(0)
    v_lshlrev_b32 v40, 16, v40
    v_lshlrev_b32 v41, 16, v41
    v_lshlrev_b32 v42, 16, v42
    v_mul_f32 v40, v40, v41
    v_cvt_pk_bf16_f32 v40, 0, v40
    s_barrier
    s_mov_b32 {sCNT}, 0
    L_poll4:
    """)
    for p in range(7): a(f"global_load_dword v{20+p}, v{54+p}, {YB} sc1")
    a(f"""
    global_load_dword v27, v52, {YB} sc1
    s_waitcnt vmcnt(0)
    v_max3_u32 v28, v20, v21, v22
    v_max3_u32 v29, v23, v24, v25
    v_max3_u32 v28, v28, v26, v27
    v_max_u32 v28, v28, v29
    v_cmp_eq_u32 vcc, -1, v28
    s_add_u32 {sCNT}, {sCNT}, 1
    s_cmp_ge_u32 {sCNT}, {SPIN}
    s_cbranch_scc1 L_poll4_done
    s_mov_b64 exec, vcc
    s_cbranch_execnz L_poll4
    L_poll4_done:
    s_mov_b64 exec, -1
    """)
    stamp(8)
    a(f"""
    v_add_f32 v20, v20, v21
    v_add_f32 v22, v22, v23
    v_add_f32 v24, v24, v25
    v_add_f32 v20, v20, v26
    v_add_f32 v22, v22, v24
    s_bitcmp1_b32 {sIDX}, 0
    s_cselect_b32 {sT1}, 0, 16
    v_add_f32 v20, v20, v22
    v_lshlrev_b32 v27, {sT1}, v27
    v_mov_b32 v21, v20
    v_and_b32 v27, {sHI}, v27
    v_permlane32_swap_b32 v20, v21
    v_add_f32 v20, v20, v21
    v_add_f32 v27, v27, v40
    v_mov_b32 v21, v20
    v_cvt_pk_bf16_f32 v27, 0, v27
    v_permlane16_swap_b32 v20, v21
    v_add_f32 v20, v20, v21
    v_add_f32 v27, v27, v42
    v_cvt_pk_bf16_f32 v20, 0, v20
    v_cvt_pk_bf16_f32 v27, 0, v27
    v_mul_f32 v20, v20, v43
    v_cvt_pk_bf16_f32 v20, 0, v20
    v_add_f32 v20, v20, v41
    v_cvt_pk_bf16_f32 v20, 0, v20
    v_add_f32 v20, v20, v27
    v_cvt_pk_bf16_f32 v20, v20, v20
    s_mov_b64 exec, 0xffff
    global_store_short v53, v20, {OUT}
    s_mov_b64 exec, -1
    s_branch L_fin
    L_spare7:
    s_barrier
    L_fin:
    """)
    if diag:
        a("s_waitcnt vmcnt(0)")
        stamp(9)
        a(f"""
        s_lshl_b32 {sT0}, s2, 3
        s_add_u32 {sT0}, {sT0}, {sWV}
        s_lshl_b32 {sT0}, {sT0}, 6
        s_add_u32 {sT0}, {sT0}, {WS_STAMP}
        v_mov_b32 v50, {sT0}
        """)
        for i in range(10): a(f"v_mov_b32 v{20+i}, s{64+2*i}")
        a(f"v_mov_b32 v30, {sCNT}\nv_mov_b32 v31, 0\ns_mov_b64 exec, 1")
        for i in range(3): a(f"global_store_dwordx4 v50, v[{20+4*i}:{23+4*i}], {WS} offset:{16*i}")
        if opt.get("dbg"):
            a(f"""
            s_load_dwordx2 s[62:63], s[0:1], 104
            s_mov_b64 exec, -1
            v_mov_b32 v40, 0
            s_not_b32 {sT0}, s64
            v_writelane_b32 v40, {sT0}, 0
            s_cmp_ge_u32 s2, 224
            s_cbranch_scc1 L_dbg_ffn
            """)
            for i in range(10): a(f"v_writelane_b32 v40, s{64+2*i}, {1+i}")
            a(f"s_cmp_eq_u32 {sWV}, 0\ns_branch L_dbg2\nL_dbg_ffn:")
            for n, i in enumerate((3, 4, 8, 9)): a(f"v_writelane_b32 v40, s{64+2*i}, {11+n}")
            a(f"s_cmp_ge_u32 s2, 252\ns_cbranch_scc1 L_end\ns_cmp_eq_u32 {sWV}, 7\nL_dbg2:\ns_cbranch_scc0 L_end")
            a(f"v_lshlrev_b32 v41, 2, v1\ns_waitcnt lgkmcnt(0)\ns_mov_b64 exec, 0xffff\nglobal_atomic_umax v41, v40, s[62:63]")
    if opt.get("hold"):
        a(f"""
        L_hold:
        s_memrealtime s[66:67]
        s_waitcnt lgkmcnt(0)
        s_sub_u32 s66, s66, s64
        s_cmp_lt_u32 s66, {opt['hold']}
        s_cbranch_scc1 L_hold
        """)
    a("L_end:\ns_endpgm\nL_code_end:")
    rep = []
    body = hz.fix(a.text(), rep)
    if opt.get("verbose"):
        for r in rep: print("nop", r)
    return single_file(body, 256, 512, LDS_BYTES, 256, sgpr=96)

if __name__ == "__main__":
    open("k_diag.s", "w").write(gen({"diag": True}))
    open("k_dbg.s", "w").write(gen({"diag": True, "dbg": True}))
    open("k_hold30.s", "w").write(gen({"hold": 3000}))
    open("k_hold14.s", "w").write(gen({"hold": 1400}))
    open("k_hold12.s", "w").write(gen({"hold": 1200}))
    open("k.s", "w").write(gen({"verbose": "-v" in sys.argv}))
```

```python
import sys, struct
from asmlib import *
import hz

def f2u(x): return struct.unpack("<I", struct.pack("<f", x))[0]

WS_E    = 0x0
WS_CAND = 0x1000
WS_XN   = 0x100000
WS_Y    = 0x300000
Y_PART  = 224 * 8192
Y_IDX   = Y_PART + 4096
WS_STAMP= 0x800000
RS    = 1040
CHS   = 53 * RS
LNX   = 110336
LNN   = LNX + 7680
CANDL = LNN + 7680
ZB    = CANDL + 128
KC    = ZB + 16
KCS   = 1568
TT    = 129024
TCS   = 2240
TTS   = 4 * TCS
U     = TT + 2 * TTS
US    = 4672
LDS_BYTES = ZB + 32768
YL    = 0
YP    = 16384
FXN = 0; FXR = 1024; FGP = 2048; FH = 8192
TAGM = 0x60006000
BIAS = (68 << 7) * 0x10001
SPIN = 200000

def gen(opt):
    diag = opt.get("diag", False)
    a = Asm()
    nst = [0]
    role = ["all"]
    def stamp(i):
        if diag: a(f"s_memrealtime s[{64+2*i}:{65+2*i}]\ns_waitcnt lgkmcnt(0)")
        elif opt.get("holdat") == (role[0], i): a(f"s_memrealtime s[64:65]\ns_waitcnt lgkmcnt(0)")
    sWV="s3"; sTB="s6"; sPR="s7"; sCH="s40"; sQ="s41"; sHI="s42"; sP="s43"; sT0="s44"; sT1="s45"; sT2="s46"; sT3="s47"
    sLD="s48"; sIDX="s49"; sCNT="s50"; sFI="s51"; sDEC=52
    sMSK=56
    X="s[8:9]"; LOGA="s[10:11]"; AIM="s[12:13]"; CRE="s[14:15]"; CIM="s[16:17]"; LDT="s[18:19]"; DSK="s[20:21]"
    WR="s[24:25]"; WG_="s[26:27]"; WU="s[28:29]"; WD="s[30:31]"; OUT="s[32:33]"; WS="s[34:35]"
    YB="s[22:23]"; XNB="s[60:61]"
    if diag or opt.get("hold"): a("s_memrealtime s[64:65]")
    a(f"""
    s_cmp_ge_u32 s2, 256
    s_cbranch_scc1 L_end
    s_load_dwordx16 s[8:23], s[0:1], 0
    s_load_dwordx8 s[24:31], s[0:1], 64
    s_load_dwordx2 {OUT}, s[0:1], 96
    s_load_dwordx2 {WS}, s[0:1], 112
    s_getpc_b64 s[4:5]
    L_pc:
    v_lshrrev_b32 v2, 6, v0
    v_lshrrev_b32 v3, 2, v0
    v_readfirstlane_b32 {sWV}, v2
    v_lshlrev_b32 v3, 7, v3
    v_min_u32 v3, L_code_end-L_pc-4, v3
    global_load_dword v9, v3, s[4:5]
    v_and_b32 v1, 63, v0
    s_and_b32 {sT0}, s2, 7
    s_lshr_b32 {sT1}, s2, 3
    s_lshl_b32 {sTB}, {sT0}, 5
    s_add_u32 {sTB}, {sTB}, {sT1}
    s_mul_i32 {sPR}, {sT0}, 28
    s_add_u32 {sPR}, {sPR}, {sT1}
    s_lshl_b32 {sT2}, {sTB}, 3
    s_add_u32 {sT2}, {sT2}, {sWV}
    s_mul_i32 {sT3}, {sT2}, 896
    v_lshlrev_b32 v4, 4, v1
    v_add_u32 v5, {sT3}, v4
    s_bfe_u32 {sCH}, {sWV}, 0x10001
    s_and_b32 {sQ}, {sWV}, 1
    s_cmp_ge_u32 {sWV}, 4
    s_cselect_b32 {sT0}, 3, 0
    s_xor_b32 {sQ}, {sQ}, {sT0}
    s_sub_u32 {sFI}, s2, 224
    v_mov_b32 v36, -1
    v_mov_b32 v37, -1
    v_mov_b32 v38, -1
    v_mov_b32 v39, -1
    v_lshlrev_b32 v6, 4, v0
    s_cmp_ge_u32 s2, 224
    s_cselect_b32 {sT0}, s2, {sPR}
    s_lshl_b32 {sT0}, {sT0}, 13
    v_add_u32 v7, {sT0}, v6
    s_mov_b32 exec_hi, 0x00ffffff
    s_waitcnt lgkmcnt(0)
    global_load_dwordx4 v[10:13], v5, {X}
    s_mov_b32 exec_hi, -1
    s_load_dwordx4 s[36:39], {WS}, {WS_E}
    s_add_u32 s22, s34, {WS_Y}
    s_addc_u32 s23, s35, 0
    s_add_u32 s60, s34, {WS_XN}
    s_addc_u32 s61, s35, 0
    global_store_dwordx4 v7, v[36:39], {YB} sc1
    s_mov_b32 exec_hi, 0x00ffffff
    global_load_dwordx4 v[14:17], v4, {WR}
    s_mov_b32 exec_hi, -1
    s_cmp_ge_u32 s2, 224
    s_cbranch_scc1 L_pro_ffn
    """)
    a(f"""
    s_lshl_b32 {sT0}, {sPR}, 1
    s_add_u32 {sT0}, {sT0}, {sCH}
    s_lshl_b32 {sT0}, {sT0}, 9
    s_lshl_b32 {sT1}, {sQ}, 7
    s_add_u32 {sT0}, {sT0}, {sT1}
    v_lshl_add_u32 v8, v1, 1, {sT0}
    global_load_ushort v40, v8, {LOGA}
    global_load_ushort v41, v8, {AIM}
    global_load_ushort v42, v8, {CRE}
    global_load_ushort v43, v8, {CIM}
    s_lshl_b32 {sT0}, {sPR}, 2
    s_load_dword {sLD}, {LDT}, {sT0}
    """)
    a(f"""
    v_mov_b32 v44, 0
    v_mov_b32 v45, 0
    v_mov_b32 v46, 0
    v_mov_b32 v47, 0
    v_add_u32 v48, {ZB}, v6
    ds_write_b128 v48, v[44:47]
    ds_write_b128 v48, v[44:47] offset:8192
    ds_write_b128 v48, v[44:47] offset:16384
    ds_write_b128 v48, v[44:47] offset:24576
    """)
    a(f"""
    s_lshl_b32 {sT0}, {sQ}, 8
    s_sub_u32 {sT0}, 1023, {sT0}
    v_lshlrev_b32 v50, 2, v1
    v_sub_u32 v50, {sT0}, v50
    s_mul_i32 {sT1}, {sCH}, {KCS}
    s_add_u32 {sT1}, {sT1}, {KC}
    s_movk_i32 {sT2}, 0x4280
    s_movk_i32 {sT3}, 128
    """)
    for i in range(7):
        a(f"""
        v_subrev_u32 v51, {i}, v50
        v_max_i32 v52, 0, v51
        v_cvt_f32_u32 v52, v52
        v_min_i32 v51, {sT3}, v51
        v_cvt_pk_bf16_f32 v52, v52, 0
        v_subrev_u32 v52, {sT2}, v52
        v_max_i32 v51, v51, v52
        v_lshl_add_u32 v{100+i}, v51, 1, {sT1}
        """)
    a(f"""
    s_mul_i32 {sT2}, {sCH}, {TTS}
    s_add_u32 {sT2}, {sT2}, {TT}
    s_lshl_b32 {sT3}, {sQ}, 9
    s_add_u32 {sT3}, {sT3}, {sT2}
    s_add_u32 {sT3}, {sT3}, 64
    v_lshl_add_u32 v107, v1, 3, {sT3}
    v_and_b32 v2, 15, v1
    v_lshrrev_b32 v3, 4, v1
    v_add_u32 v51, v2, v3
    v_mov_b32 v52, 511
    v_cmp_gt_u32 vcc, 18, v51
    v_addc_co_u32 v52, vcc, 0, v52, vcc
    v_cmp_gt_u32 vcc, 11, v51
    v_addc_co_u32 v52, vcc, 0, v52, vcc
    v_cmp_le_u32 vcc, 4, v51
    v_cndmask_b32 v52, -1, v52, vcc
    v_lshl_add_u32 v108, v52, 1, {sT1}
    v_mul_u32_u24 v51, {TCS}, v3
    v_lshl_add_u32 v51, v2, 1, v51
    v_add3_u32 v109, v51, {sT2}, 32
    v_sub_u32 v51, 15, v2
    v_and_b32 v52, 3, v51
    v_sub_u32 v51, v51, v52
    v_lshl_add_u32 v51, v3, 3, v51
    v_mul_u32_u24 v52, {TCS}, v52
    v_lshl_add_u32 v51, v51, 1, v52
    v_add_u32 v110, {sT2}, v51
    s_mul_i32 {sT0}, {sCH}, {US}
    s_lshl_b32 {sT3}, {sQ}, 10
    s_add_u32 {sT0}, {sT0}, {sT3}
    s_add_u32 {sT0}, {sT0}, {U + 448 - 2048}
    v_lshlrev_b32 v51, 5, v2
    v_lshl_add_u32 v51, v3, 4, v51
    v_add_u32 v111, {sT0}, v51
    s_mul_i32 {sT0}, {sCH}, {CHS}
    s_lshl_b32 {sT3}, {sQ}, 8
    s_add_u32 {sT0}, {sT0}, {sT3}
    s_mov_b32 m0, {sT0}
    v_and_b32 v51, 31, v1
    v_lshrrev_b32 v52, 5, v1
    v_mul_u32_u24 v53, {RS}, v51
    v_lshl_add_u32 v53, v52, 4, v53
    v_add_u32 v112, {sT0}, v53
    v_mul_u32_u24 v53, {RS}, v3
    v_lshl_add_u32 v53, v2, 4, v53
    v_add_u32 v113, {sT0}, v53
    s_and_b32 {sT0}, {sWV}, 1
    s_lshr_b32 {sT3}, {sWV}, 1
    s_mul_i32 {sT1}, {sT0}, {CHS}
    s_mul_i32 {sT2}, {sT3}, {4*RS}
    s_add_u32 {sT1}, {sT1}, {sT2}
    v_add_u32 v114, {sT1}, v53
    s_mul_i32 {sT0}, {sT0}, {KCS}
    s_lshl_b32 {sT1}, {sT3}, 9
    s_add_u32 {sT0}, {sT0}, {sT1}
    s_add_u32 {sT0}, {sT0}, {KC}
    s_cmp_eq_u32 {sT3}, 0
    s_cselect_b32 {sT1}, 3, 8
    v_lshlrev_b32 v53, {sT1}, v52
    s_cselect_b32 {sT1}, 4, 1
    s_cselect_b32 {sT2}, 4, 128
    s_cmp_eq_u32 {sT3}, 1
    s_cselect_b32 {sT1}, 3, {sT1}
    s_cselect_b32 {sP}, 1, 0
    v_and_b32 v54, {sP}, v52
    v_sub_u32 v54, {sT1}, v54
    v_lshlrev_b32 v54, v54, v51
    v_add3_u32 v115, v53, v54, {sT0}
    s_cmp_eq_u32 {sT3}, 2
    s_cselect_b32 {sT0}, 64, 2
    s_cselect_b32 {sT1}, 128, 4
    v_mov_b32 v53, {sT1}
    v_mov_b32 v54, {sT2}
    v_cmp_eq_u32 vcc, 0, v52
    v_cndmask_b32 v53, v54, v53, vcc
    v_add_u32 v116, {sT0}, v115
    v_add_u32 v117, v53, v115
    v_add_u32 v118, {sT0}, v117
    s_branch L_ln
    """)
    a(f"""
    L_pro_ffn:
    global_load_dword v40, v3, s[4:5]
    global_load_dword v41, v3, s[4:5]
    global_load_dword v42, v3, s[4:5]
    global_load_dword v43, v3, s[4:5]
    v_and_b32 v2, 15, v1
    v_lshrrev_b32 v3, 4, v1
    """)
    a(f"""
    L_ln:
    s_mov_b32 {sHI}, 0xffff0000
    s_mul_i32 {sT0}, {sWV}, 960
    s_add_u32 {sT0}, {sT0}, {LNX}
    v_add_u32 v18, {sT0}, v4
    v_mov_b32 v44, 0
    v_mov_b32 v45, 0
    v_mov_b32 v46, 0
    v_and_b32 v50, 0x1f0, v0
    v_and_b32 v51, 3, v0
    v_lshlrev_b32 v50, 1, v50
    v_lshl_add_u32 v50, v51, 3, v50
    v_bfe_u32 v51, v0, 2, 2
    v_mul_u32_u24 v51, 960, v51
    v_add_u32 v50, v50, v51
    v_add_u32 v19, {LNX}, v50
    s_mul_i32 {sT0}, {sTB}, 7168
    v_add_u32 v49, {sT0}, v6
    s_waitcnt lgkmcnt(0)
    """)
    for i in range(4):
        a(f"s_andn2_b32 s{sMSK+i}, {TAGM}, s{36+i}\ns_sub_u32 s{sDEC+i}, {BIAS}, s{sMSK+i}")
    a("s_mov_b32 exec_hi, 0x00ffffff\ns_waitcnt vmcnt(6)")
    stamp(1)
    for i in range(4):
        a(f"v_lshlrev_b32 v{20+2*i}, 16, v{10+i}\nv_and_b32 v{21+2*i}, {sHI}, v{10+i}")
    a(f"v_readfirstlane_b32 {sP}, v20\nds_write_b128 v18, v[10:13]")
    for i in range(8): a(f"v_subrev_f32 v{28+i}, {sP}, v{20+i}")
    a(f"""
    v_add_f32 v44, v28, v29
    v_mul_f32 v45, v28, v28
    v_add_f32 v50, v30, v31
    v_mul_f32 v51, v29, v29
    v_add_f32 v52, v32, v33
    v_fmac_f32 v45, v30, v30
    v_add_f32 v53, v34, v35
    v_fmac_f32 v51, v31, v31
    v_add_f32 v44, v44, v50
    v_fmac_f32 v45, v32, v32
    v_add_f32 v52, v52, v53
    v_fmac_f32 v51, v33, v33
    v_fmac_f32 v45, v34, v34
    v_fmac_f32 v51, v35, v35
    v_add_f32 v44, v44, v52
    v_add_f32 v45, v45, v51
    s_mov_b32 exec_hi, -1
    v_permlane32_swap_b32 v44, v45
    v_add_f32 v44, v44, v45
    v_add_f32_dpp v44, v44, v44 row_ror:8 row_mask:0xf bank_mask:0xf
    v_add_f32_dpp v44, v44, v44 row_ror:4 row_mask:0xf bank_mask:0xf
    v_add_f32_dpp v44, v44, v44 row_ror:2 row_mask:0xf bank_mask:0xf
    v_add_f32_dpp v44, v44, v44 row_ror:1 row_mask:0xf bank_mask:0xf
    v_add_f32_dpp v44, v44, v44 row_bcast:15 row_mask:0xa bank_mask:0xf
    v_mul_f32 v44, {hex(f2u(1.0/448))}, v44
    v_readlane_b32 {sT0}, v44, 16
    v_readlane_b32 {sT1}, v44, 48
    v_mov_b32 v50, {sT0}
    v_fma_f32 v51, -v50, v50, {sT1}
    v_add_f32 v50, {sP}, v50
    v_max_f32 v51, 0, v51
    v_cvt_pk_bf16_f32 v50, v50, v51
    v_and_b32 v51, {sHI}, v50
    v_lshlrev_b32 v57, 16, v50
    v_add_f32 v51, {hex(f2u(1e-5))}, v51
    v_sub_f32 v20, v20, v57
    v_cvt_pk_bf16_f32 v51, 0, v51
    v_sub_f32 v21, v21, v57
    v_sqrt_f32 v51, v51
    v_sub_f32 v22, v22, v57
    v_sub_f32 v23, v23, v57
    v_cvt_pk_bf16_f32 v51, 0, v51
    v_sub_f32 v24, v24, v57
    v_rcp_f32 v58, v51
    v_sub_f32 v25, v25, v57
    v_sub_f32 v26, v26, v57
    v_sub_f32 v27, v27, v57
    v_mul_f32 v52, {hex(f2u(2.0**-68))}, v58
    """)
    for i in range(4): a(f"v_cvt_pk_bf16_f32 v{28+i}, v{20+2*i}, v{21+2*i}")
    for i in range(4): a(f"v_lshlrev_b32 v{20+2*i}, 16, v{28+i}\nv_and_b32 v{21+2*i}, {sHI}, v{28+i}")
    for i in range(8): a(f"v_mul_f32 v{20+i}, v52, v{20+i}")
    for i in range(4): a(f"v_cvt_pk_bf16_f32 v{28+i}, v{20+2*i}, v{21+2*i}")
    a(f"""
    s_mov_b32 exec_hi, 0x00ffffff
    ds_write_b128 v18, v[28:31] offset:7680
    s_mov_b32 {sT0}, {BIAS}
    """)
    for i in range(4): a(f"v_add_u32 v{32+i}, {sT0}, v{28+i}")
    a("s_waitcnt vmcnt(4)")
    for i in range(4): a(f"v_dot2c_f32_bf16 v46, v{32+i}, v{14+i}")
    a(f"""
    s_mov_b32 exec_hi, -1
    s_waitcnt lgkmcnt(0)
    s_barrier
    s_cmp_eq_u32 {sWV}, 7
    s_cbranch_scc1 L_nogran
    ds_read_b64_tr_b16 v[20:21], v19 offset:7680
    ds_read_b64_tr_b16 v[22:23], v19 offset:{7680+3840}
    L_nogran:
    v_add_f32_dpp v46, v46, v46 row_ror:8 row_mask:0xf bank_mask:0xf
    v_add_f32_dpp v46, v46, v46 row_ror:4 row_mask:0xf bank_mask:0xf
    v_add_f32_dpp v46, v46, v46 row_ror:2 row_mask:0xf bank_mask:0xf
    v_add_f32_dpp v46, v46, v46 row_ror:1 row_mask:0xf bank_mask:0xf
    s_cbranch_scc1 L_nogran2
    s_waitcnt lgkmcnt(0)
    """)
    for i in range(4): a(f"v_or_b32 v{20+i}, s{sMSK+i}, v{20+i}")
    a(f"""
    global_store_dwordx4 v49, v[20:23], {XNB} sc1
    L_nogran2:
    s_nop 0
    v_add_f32_dpp v46, v46, v46 row_bcast:15 row_mask:0xa bank_mask:0xf
    s_lshl_b32 {sT2}, {sTB}, 3
    s_add_u32 {sT2}, {sT2}, {sWV}
    v_add_f32_dpp v46, v46, v46 row_bcast:31 row_mask:0xc bank_mask:0xf
    s_lshl_b32 {sT0}, {sWV}, 4
    s_add_u32 {sT0}, {sT0}, {CANDL}
    v_cvt_pk_bf16_f32 v46, 0, v46
    v_mov_b32 v50, {sT0}
    v_or_b32 v56, {sT2}, v46
    s_not_b32 {sT1}, s39
    v_mov_b32 v59, {sT1}
    s_mov_b32 exec_lo, 0
    s_mov_b32 exec_hi, 0x80000000
    ds_write_b128 v50, v[56:59]
    s_mov_b64 exec, -1
    s_waitcnt lgkmcnt(0)
    s_barrier
    """)
    stamp(2)
    a(f"""
    s_cmp_lg_u32 {sWV}, 7
    s_cbranch_scc1 L_nocand
    v_and_b32 v50, 7, v1
    v_lshlrev_b32 v50, 4, v50
    v_add_u32 v50, {CANDL}, v50
    ds_read_b128 v[56:59], v50
    s_lshl_b32 {sT0}, {sTB}, 4
    s_add_u32 {sT0}, {sT0}, {WS_CAND}
    v_mov_b32 v51, {sT0}
    s_waitcnt lgkmcnt(0)
    v_max_f32_dpp v50, v56, v56 row_ror:4 row_mask:0xf bank_mask:0xf
    v_max_f32_dpp v50, v50, v50 row_ror:2 row_mask:0xf bank_mask:0xf
    v_max_f32_dpp v50, v50, v50 row_ror:1 row_mask:0xf bank_mask:0xf
    v_cmp_eq_u32 vcc, v50, v56
    s_and_b32 exec_lo, vcc_lo, 0xff
    s_mov_b32 exec_hi, 0
    global_store_dwordx4 v51, v[56:59], {WS} sc1
    s_mov_b64 exec, -1
    L_nocand:
    s_cmp_ge_u32 s2, 224
    s_cbranch_scc1 L_ffn
    """)
    role[0] = 'conv'
    LOG2E = hex(f2u(1.4426950408889634))
    a(f"""
    s_lshl_b32 {sT0}, {sLD}, 16
    s_and_b32 {sT1}, {sLD}, {sHI}
    s_cmp_eq_u32 {sCH}, 0
    s_cselect_b32 {sT0}, {sT0}, {sT1}
    s_mov_b32 {sT1}, {LOG2E}
    v_mov_b32 v50, {sT0}
    v_mul_f32 v50, {sT1}, v50
    s_waitcnt vmcnt(1)
    v_lshlrev_b32 v40, 16, v40
    v_exp_f32 v50, v50
    v_mul_f32 v40, {sT1}, v40
    v_lshlrev_b32 v41, 16, v41
    v_exp_f32 v40, v40
    v_cvt_pk_bf16_f32 v50, 0, v50
    v_lshlrev_b32 v42, 16, v42
    v_lshlrev_b32 v43, 16, v43
    v_cvt_pk_bf16_f32 v40, 0, v40
    v_mul_f32 v41, v50, v41
    v_add_f32 v51, v50, v50
    v_mul_f32 v40, v50, v40
    v_mul_f32 v41, 0.15915494, v41
    v_mul_f32 v40, {hex(f2u(-1.4426950408889634))}, v40
    v_mul_f32 v42, v51, v42
    v_mul_f32 v43, v51, v43
    """)
    for (p, r, t) in ((1, 60, 20), (8, 63, 24), (128, 66, 28)):
        if p == 1: a(f"v_exp_f32 v{t}, v40\nv_fract_f32 v{t+1}, v41")
        else: a(f"v_mul_f32 v{t}, {hex(f2u(p))}, v40\nv_mul_f32 v{t+1}, {hex(f2u(p))}, v41\nv_exp_f32 v{t}, v{t}\nv_fract_f32 v{t+1}, v{t+1}")
    for (p, r, t) in ((1, 60, 20), (8, 63, 24), (128, 66, 28)):
        a(f"v_cos_f32 v{t+2}, v{t+1}\nv_sin_f32 v{t+3}, v{t+1}")
    for (p, r, t) in ((1, 60, 20), (8, 63, 24), (128, 66, 28)):
        a(f"v_mul_f32 v{r}, v{t}, v{t+2}\nv_mul_f32 v{r+1}, v{t}, v{t+3}")
    for r in (60, 63, 66): a(f"v_sub_f32 v{r+2}, 0, v{r+1}")
    tmp = [0]
    def put(row, re, im, conj):
        t = 52 + tmp[0] % 4; tmp[0] += 1
        return [f"v_cvt_pk_bf16_f32 v{t}, v{re}, {'-' if conj else ''}v{im}", f"ds_write_addtid_b32 v{t} offset:{row*RS}"]
    def cmul(d, x, w):
        return [f"v_mul_f32 v{d}, v{x}, v{w}", f"v_mul_f32 v{d+1}, v{x}, v{w+1}",
                f"v_fmac_f32 v{d}, v{x+1}, v{w+2}", f"v_fmac_f32 v{d+1}, v{x+1}, v{w}"]
    def inter(x, y):
        for i in range(max(len(x), len(y))):
            if i < len(x): a(x[i])
            if i < len(y): a(y[i])
    G0 = 21
    inter(cmul(69, 66, 66) + ["v_sub_f32 v71, 0, v70"], cmul(72, 60, 60) + ["v_sub_f32 v74, 0, v73"])
    inter(cmul(75, 72, 72) + ["v_sub_f32 v77, 0, v76"], ["v_mov_b32 v51, 0x3f80", f"ds_write_addtid_b32 v51 offset:{G0*RS}"] + put(0, 42, 43, True))
    inter(put(G0 + 1, 63, 64, False), put(G0 + 16, 66, 67, False))
    ga = []; src = 63
    for j in range(2, 16):
        d = 20 + 2 * (j & 1); ga.append((d, src, 63, G0 + j, False)); src = d
    gb = []; src = 66
    for j in range(17, 32):
        d = 24 + 2 * (j & 1); gb.append((d, src, 63, G0 + j, False)); src = d
    fa = []; src = 42
    for h in range(1, 8):
        d = 28 + 2 * (h & 1); fa.append((d, src, 60, h, True)); src = d
    fb = [(80, 42, 69, 8, True), (82, 80, 69, 12, True), (84, 82, 69, 14, True)]
    src = 84
    for k in range(5):
        d = 32 + 2 * (k & 1); fb.append((d, src, 69, 16 + k, True)); src = d
    fc = [(28, 80, 72, 9, True), (30, 28, 72, 10, True), (28, 30, 72, 11, True), (30, 82, 75, 13, True), (28, 84, 75, 15, True)]
    A_ = ga + fa + fc[:3]
    B_ = fb + gb + [(32, 82, 75, 13, True), (34, 84, 75, 15, True)]
    for i in range(max(len(A_), len(B_))):
        xs = []
        for L in (A_, B_):
            if i < len(L):
                d, s_, w, row, cj = L[i]
                xs.append(cmul(d, s_, w) + put(row, d, d + 1, cj))
            else: xs.append([])
        inter(xs[0], xs[1])
    stamp(3)
    for st in range(8):
        a(f"ds_read_b128 v[{120+8*st}:{123+8*st}], v112 offset:{32*st}")
        a(f"ds_read_b128 v[{124+8*st}:{127+8*st}], v112 offset:{G0*RS+32*st}")
        if st >= 4:
            s2_ = st - 4
            a(f"s_waitcnt lgkmcnt(8)")
            a(f"v_mfma_f32_32x32x16_bf16 v[20:35], v[{120+8*s2_}:{123+8*s2_}], v[{124+8*s2_}:{127+8*s2_}], {'0' if s2_==0 else 'v[20:35]'}")
    for s2_ in range(4, 8):
        a(f"s_waitcnt lgkmcnt({2*(7-s2_)})")
        a(f"v_mfma_f32_32x32x16_bf16 v[20:35], v[{120+8*s2_}:{123+8*s2_}], v[{124+8*s2_}:{127+8*s2_}], v[20:35]")
    for s_ in range(3): a(f"ds_write_b128 v113, v[{20+4*s_}:{23+4*s_}] offset:{4*RS*s_}")
    a(f"""
    s_waitcnt lgkmcnt(0)
    s_barrier
    s_cmp_ge_u32 {sWV}, 6
    s_cbranch_scc1 L_noR
    """)
    for nq in range(4): a(f"ds_read_b128 v[{20+4*nq}:{23+4*nq}], v114 offset:{256*nq}")
    a("s_waitcnt lgkmcnt(2)")
    for i in range(4): a(f"v_add_f32 v{20+i}, v{20+i}, v{24+i}")
    a("s_waitcnt lgkmcnt(0)")
    for i in range(4): a(f"v_add_f32 v{28+i}, v{28+i}, v{32+i}")
    for i in range(4): a(f"v_add_f32 v{20+i}, v{20+i}, v{28+i}")
    a(f"""
    v_cvt_pk_bf16_f32 v20, v20, v21
    v_cvt_pk_bf16_f32 v22, v22, v23
    ds_write_b16 v115, v20
    ds_write_b16_d16_hi v116, v20
    ds_write_b16 v117, v22
    ds_write_b16_d16_hi v118, v22
    s_waitcnt lgkmcnt(0)
    L_noR:
    s_barrier
    """)
    for i in range(7): a(f"ds_read_u16 v{20+i}, v{100+i}")
    a(f"""
    ds_read_u16 v27, v108
    s_waitcnt lgkmcnt(4)
    v_lshl_or_b32 v28, v21, 16, v20
    v_lshl_or_b32 v29, v23, 16, v22
    v_lshl_or_b32 v30, v22, 16, v21
    v_lshl_or_b32 v32, v23, 16, v22
    ds_write_b64 v107, v[28:29]
    s_waitcnt lgkmcnt(2)
    v_lshl_or_b32 v31, v24, 16, v23
    v_lshl_or_b32 v33, v25, 16, v24
    v_lshl_or_b32 v34, v24, 16, v23
    v_lshl_or_b32 v35, v26, 16, v25
    ds_write_b64 v107, v[30:31] offset:{TCS}
    ds_write_b64 v107, v[32:33] offset:{2*TCS}
    ds_write_b64 v107, v[34:35] offset:{3*TCS}
    s_waitcnt lgkmcnt(4)
    ds_write_b16 v109, v27
    v_lshrrev_b32 v52, 1, v0
    v_and_b32 v53, 1, v0
    v_mul_u32_u24 v50, 7168, v52
    v_lshl_add_u32 v50, v53, 4, v50
    s_lshl_b32 {sT0}, {sPR}, 5
    v_add_u32 v50, {sT0}, v50
    v_mul_u32_u24 v51, {US}, v53
    v_lshl_add_u32 v51, v52, 4, v51
    v_add_u32 v51, {U+480}, v51
    s_waitcnt lgkmcnt(0)
    s_barrier
    """)
    stamp(4)
    a(f"global_load_dwordx4 v[20:23], v50, {XNB} sc1")
    AF = 120
    def aload(m):
        a(f"ds_read_b64 v[{AF+4*m}:{AF+4*m+1}], v110 offset:{64*(32-m)}\nds_read_b64 v[{AF+4*m+2}:{AF+4*m+3}], v110 offset:{64*(32-m)+8}")
    for m in range(16): aload(m)
    a(f"s_cmp_eq_u32 {sQ}, 0\ns_cbranch_scc1 L_aq0")
    for m in range(16, 33): aload(m)
    a("s_branch L_adone\nL_aq0:")
    a(f"""
    s_mul_i32 {sT0}, {sCH}, {KCS}
    s_add_u32 {sT0}, {sT0}, {KC + 1024 + 4*(64-63-3)}
    v_lshlrev_b32 v52, 2, v3
    v_sub_u32 v52, v2, v52
    v_lshl_add_u32 v53, v52, 2, {sT0}
    """)
    for mu in range(4):
        a(f"ds_read2_b32 v[{184+4*mu}:{185+4*mu}], v53 offset0:{16*mu+3} offset1:{16*mu+2}")
        a(f"ds_read2_b32 v[{186+4*mu}:{187+4*mu}], v53 offset0:{16*mu+1} offset1:{16*mu}")
    a(f"""
    v_lshlrev_b32 v54, 3, v3
    v_sub_u32 v54, v2, v54
    v_mov_b32 v55, 0x3f80
    v_mov_b32 v56, 0x3f800000
    """)
    for dw in range(4):
        for (dst, lo, n) in ((200 + dw, -4, 9), (204 + dw, 5, 7)):
            a(f"""
            v_add_u32 v57, {12 - 2*dw - lo}, v54
            v_add_u32 v58, {12 - 2*dw - 1 - lo}, v54
            v_cmp_gt_u32 vcc, {n}, v57
            v_cmp_gt_u32 s[62:63], {n}, v58
            v_cndmask_b32 v57, 0, v55, vcc
            v_cndmask_b32 v58, 0, v56, s[62:63]
            v_or_b32 v{dst}, v57, v58
            """)
    a("s_waitcnt lgkmcnt(0)")
    for r in range(4):
        a(f"v_cmp_le_i32 vcc, {r}, v52\nv_cndmask_b32 v{184+r}, 0, v{184+r}, vcc")
    a(f"""
    L_adone:
    s_mov_b32 {sCNT}, 0
    s_mov_b32 {sT0}, {TAGM}
    L_poll1:
    s_waitcnt vmcnt(0)
    v_xor_b32 v24, s{sMSK}, v20
    v_bitop3_b32 v24, v24, v21, s{sMSK+1} bitop3:0xf6
    v_bitop3_b32 v24, v24, v22, s{sMSK+2} bitop3:0xf6
    v_bitop3_b32 v24, v24, v23, s{sMSK+3} bitop3:0xf6
    v_and_b32 v24, {sT0}, v24
    v_cmp_ne_u32 vcc, 0, v24
    s_add_u32 {sCNT}, {sCNT}, 1
    s_cbranch_vccz L_poll1_done
    s_cmp_ge_u32 {sCNT}, {SPIN}
    s_cbranch_scc1 L_poll1_done
    s_mov_b64 exec, vcc
    global_load_dwordx4 v[20:23], v50, {XNB} sc1
    s_branch L_poll1
    L_poll1_done:
    s_mov_b64 exec, -1
    """)
    for i in range(4): a(f"v_add_u32 v{20+i}, s{sDEC+i}, v{20+i}")
    a(f"""
    ds_write_b128 v51, v[20:23]
    s_waitcnt lgkmcnt(0)
    s_barrier
    """)
    stamp(5)
    NB = 6; BF = 60
    UP = "v[20:23]"; LO = "v[24:27]"
    def bload(mp): a(f"ds_read_b128 v[{BF+4*(mp%NB)}:{BF+4*(mp%NB)+3}], v111 offset:{64*(40-mp)}")
    for mp in range(NB - 1): bload(mp)
    a(f"""
    s_or_b32 {sT0}, s2, {sWV}
    s_cmp_lg_u32 {sT0}, 0
    s_cbranch_scc1 L_noE
    v_not_b32 v28, s36
    v_not_b32 v29, s37
    v_not_b32 v30, s38
    v_not_b32 v31, s39
    v_mov_b32 v32, {WS_E}
    s_mov_b64 exec, 1
    global_store_dwordx4 v32, v[28:31], {WS} sc1
    s_mov_b64 exec, -1
    L_noE:
    """)
    for mp in range(41):
        if mp == 16: a(f"s_cmp_eq_u32 {sQ}, 0\ns_cbranch_scc1 L_seg3")
        if mp == 32: a(f"s_cmp_eq_u32 {sQ}, 1\ns_cbranch_scc1 L_convdone")
        if mp + NB - 1 <= 40:
            bload(mp + NB - 1); a(f"s_waitcnt lgkmcnt({NB-1})")
        else: a(f"s_waitcnt lgkmcnt({40-mp})")
        b = f"v[{BF+4*(mp%NB)}:{BF+4*(mp%NB)+3}]"
        if mp <= 32: a(f"v_mfma_f32_16x16x32_bf16 {UP}, v[{AF+4*mp}:{AF+4*mp+3}], {b}, {'0' if mp==0 else UP}")
        if mp >= 8: a(f"v_mfma_f32_16x16x32_bf16 {LO}, v[{AF+4*(mp-8)}:{AF+4*(mp-8)+3}], {b}, {'0' if mp==8 else LO}")
    a("s_branch L_convdone\nL_seg3:")
    o3 = 2048 - 448 + 480 - 56
    a("s_waitcnt lgkmcnt(0)")
    for nu in range(4):
        a(f"ds_read_b64 v[{60+4*nu}:{61+4*nu}], v111 offset:{o3+512*nu}\nds_read_b64 v[{62+4*nu}:{63+4*nu}], v111 offset:{o3+512*nu+8}")
    for nu in range(4):
        a(f"s_waitcnt lgkmcnt({6-2*nu})")
        a(f"v_mfma_f32_16x16x32_bf16 v[{208+8*nu}:{211+8*nu}], v[{60+4*nu}:{63+4*nu}], v[200:203], 0")
        a(f"v_mfma_f32_16x16x32_bf16 v[{212+8*nu}:{215+8*nu}], v[{60+4*nu}:{63+4*nu}], v[204:207], 0")
    for nu in range(4):
        for r in range(4): a(f"v_cvt_pk_bf16_f32 v{76+4*nu+r}, v{208+8*nu+r}, v{212+8*nu+r}")
        for mu in range(4 - nu):
            c = nu + mu
            a(f"v_mfma_f32_16x16x32_bf16 v[{28+4*c}:{31+4*c}], v[{76+4*nu}:{79+4*nu}], v[{184+4*mu}:{187+4*mu}], {'0' if nu==0 else f'v[{28+4*c}:{31+4*c}]'}")
    def yaddr(dst):
        a(f"""
        v_lshlrev_b32 v52, 2, v3
        v_and_b32 v52, 8, v52
        v_or_b32 v52, {sCH}, v52
        v_xor_b32 v52, v2, v52
        v_lshlrev_b32 v52, 4, v52
        v_lshl_add_u32 v{dst}, v3, 8, v52
        """)
    yaddr(53)
    a(f"s_lshl_b32 {sT0}, {sCH}, 12\nv_add_u32 v53, {sT0}, v53")
    for c in range(4): a(f"ds_write_b128 v53, v[{28+4*c}:{31+4*c}] offset:{YP+1024*c}")
    a("L_convdone:")
    yaddr(53)
    a(f"""
    s_lshl_b32 {sT0}, {sCH}, 13
    s_lshl_b32 {sT1}, {sQ}, 11
    s_add_u32 {sT0}, {sT0}, {sT1}
    v_add_u32 v53, {sT0}, v53
    v_and_b32 v54, 1, v1
    v_lshrrev_b32 v55, 2, v1
    v_bfe_u32 v56, v1, 1, 1
    v_lshl_or_b32 v57, v56, 3, v54
    v_xor_b32 v55, v55, v57
    v_lshlrev_b32 v55, 4, v55
    v_lshl_add_u32 v55, v56, 9, v55
    s_lshl_b32 {sT0}, {sWV}, 10
    v_add_u32 v55, {sT0}, v55
    v_lshl_add_u32 v56, v54, 12, v55
    v_lshl_add_u32 v55, v54, 13, v55
    s_nop 1
    ds_write_b128 v53, {UP} offset:{YL+1024}
    ds_write_b128 v53, {LO} offset:{YL}
    s_waitcnt lgkmcnt(0)
    s_barrier
    """)
    stamp(6)
    a(f"""
    ds_read_b128 v[20:23], v55 offset:{YL}
    ds_read_b128 v[24:27], v55 offset:{YL+256}
    s_cmp_lt_u32 {sWV}, 4
    s_cbranch_scc1 L_nopart
    ds_read_b128 v[28:31], v56 offset:{YP-4096}
    ds_read_b128 v[32:35], v56 offset:{YP-4096+256}
    s_waitcnt lgkmcnt(0)
    """)
    for i in range(8): a(f"v_add_f32 v{20+i}, v{20+i}, v{28+i}")
    a("L_nopart:\ns_waitcnt lgkmcnt(0)")
    for i in range(4): a(f"v_cvt_pk_bf16_f32 v{28+i}, v{20+2*i}, v{21+2*i}")
    a(f"global_store_dwordx4 v7, v[28:31], {YB} sc1")
    stamp(7)
    role[0] = 'all'
    a(f"""
    L_epi:
    s_cmp_eq_u32 {sWV}, 7
    s_cbranch_scc1 L_fin
    v_lshlrev_b32 v50, 1, v0
    global_load_ushort v40, v50, {DSK}
    ds_read_b64_tr_b16 v[60:61], v19
    ds_read_b64_tr_b16 v[62:63], v19 offset:3840
    ds_read_b64_tr_b16 v[64:65], v19 offset:7680
    ds_read_b64_tr_b16 v[66:67], v19 offset:{7680+3840}
    v_lshrrev_b32 v52, 1, v0
    v_and_b32 v53, 1, v0
    v_lshlrev_b32 v52, 13, v52
    v_lshl_add_u32 v52, v53, 4, v52
    s_lshl_b32 {sT0}, {sTB}, 5
    v_add_u32 v52, {sT0}, v52
    v_mov_b32 v53, {Y_IDX}
    s_mul_i32 {sT0}, {sTB}, 7168
    s_add_u32 {sT0}, {sT0}, 3584
    v_add_u32 v50, {sT0}, v50
    s_mov_b32 {sT1}, {BIAS}
    s_waitcnt lgkmcnt(0)
    """)
    for i in range(4):
        a(f"v_add_u32 v{64+i}, {sT1}, v{64+i}\nv_lshlrev_b32 v{70+2*i}, 16, v{60+i}\nv_and_b32 v{71+2*i}, {sHI}, v{60+i}")
    for i in range(4): a(f"v_lshlrev_b32 v{80+2*i}, 16, v{64+i}\nv_and_b32 v{81+2*i}, {sHI}, v{64+i}")
    a("s_waitcnt vmcnt(0)\nv_lshlrev_b32 v40, 16, v40")
    a(f"global_load_dwordx4 v[20:23], v52, {YB} sc1\nglobal_load_dword v24, v53, {YB} sc1")
    for i in range(8): a(f"v_mul_f32 v{90+i}, v40, v{80+i}")
    for i in range(4): a(f"v_cvt_pk_bf16_f32 v{60+i}, v{90+2*i}, v{91+2*i}")
    for i in range(4): a(f"v_lshlrev_b32 v{90+2*i}, 16, v{60+i}\nv_and_b32 v{91+2*i}, {sHI}, v{60+i}")
    a(f"""
    s_mov_b32 {sCNT}, 0
    L_poll2:
    s_waitcnt vmcnt(0)
    v_max3_u32 v25, v20, v21, v22
    v_max3_u32 v25, v25, v23, v24
    v_cmp_eq_u32 vcc, -1, v25
    s_add_u32 {sCNT}, {sCNT}, 1
    s_cbranch_vccz L_poll2_done
    s_cmp_ge_u32 {sCNT}, {SPIN}
    s_cbranch_scc1 L_poll2_done
    s_mov_b64 exec, vcc
    global_load_dwordx4 v[20:23], v52, {YB} sc1
    global_load_dword v24, v53, {YB} sc1
    s_branch L_poll2
    L_poll2_done:
    s_mov_b64 exec, -1
    """)
    stamp(8)
    a(f"v_readfirstlane_b32 {sIDX}, v24")
    for i in range(4): a(f"v_lshlrev_b32 v{28+2*i}, 16, v{20+i}\nv_and_b32 v{29+2*i}, {sHI}, v{20+i}")
    for base in (90, 70):
        for i in range(8): a(f"v_add_f32 v{28+i}, v{28+i}, v{base+i}")
        for i in range(4): a(f"v_cvt_pk_bf16_f32 v{20+i}, v{28+2*i}, v{29+2*i}")
        for i in range(4): a(f"v_lshlrev_b32 v{28+2*i}, 16, v{20+i}\nv_and_b32 v{29+2*i}, {sHI}, v{20+i}")
    for i in range(8): a(f"v_add_f32 v{28+i}, v{28+i}, v{80+i}")
    for i in range(4): a(f"v_cvt_pk_bf16_f32 v{20+i}, v{28+2*i}, v{29+2*i}")
    a(f"s_lshl_b32 {sT0}, {sTB}, 3\ns_sub_u32 {sT0}, {sIDX}, {sT0}")
    for r in range(8):
        a(f"s_cmp_eq_u32 {sT0}, {r}\ns_cbranch_scc1 L_sk{r}")
        a(f"global_store_short{'_d16_hi' if r & 1 else ''} v50, v{20+r//2}, {OUT} offset:{896*(r-4)}")
        a(f"L_sk{r}:")
    a("s_branch L_fin")
    role[0] = 'ffn'
    def perms(src, dst):
        for kp in range(4):
            for dw in range(4):
                a(f"v_perm_b32 v{dst+4*(2*dw)+kp}, v{src+4*(2*kp+1)+dw}, v{src+4*(2*kp)+dw}, {sT2}")
                a(f"v_perm_b32 v{dst+4*(2*dw+1)+kp}, v{src+4*(2*kp+1)+dw}, v{src+4*(2*kp)+dw}, {sT3}")
    def gemv(afrag, w, acc, res):
        for e in range(8): a(f"v_mfma_f32_16x16x32_bf16 v[{acc+4*e}:{acc+4*e+3}], v[{afrag}:{afrag+3}], v[{w+4*e}:{w+4*e+3}], 0")
    def fold(acc, res):
        for e in range(4): a(f"v_add_f32_dpp v{res+e}, v{acc+4*e+1}, v{acc+4*e} row_shl:8 row_mask:0xf bank_mask:0x3")
        for e in range(4, 8): a(f"v_add_f32_dpp v{res+e-4}, v{acc+4*e}, v{acc+4*e+1} row_shr:8 row_mask:0xf bank_mask:0xc")
    a(f"""
    L_ffn:
    s_cmp_eq_u32 {sWV}, 7
    s_cbranch_scc1 L_ffn7
    s_cmp_ge_u32 {sFI}, 28
    s_cbranch_scc1 L_spare
    v_lshrrev_b32 v50, 3, v2
    v_lshl_add_u32 v50, v50, 2, v3
    v_and_b32 v51, 7, v2
    v_lshlrev_b32 v51, 4, v51
    s_movk_i32 {sT0}, {8*3584}
    v_mad_u32_u24 v52, v50, {sT0}, v51
    s_mul_i32 {sT0}, {sWV}, {64*3584}
    s_lshl_b32 {sT1}, {sFI}, 7
    s_add_u32 {sT0}, {sT0}, {sT1}
    s_add_u32 {sT0}, {sT0}, 3584
    v_add_u32 v52, {sT0}, v52
    v_add_u32 v53, {3*3584}, v52
    v_add_u32 v54, {6*3584}, v52
    s_movk_i32 {sT0}, {8*896}
    v_mad_u32_u24 v55, v50, {sT0}, v51
    s_mul_i32 {sT0}, {sFI}, {64*896}
    s_lshl_b32 {sT1}, {sWV}, 7
    s_add_u32 {sT0}, {sT0}, {sT1}
    s_add_u32 {sT0}, {sT0}, 3584
    v_add_u32 v55, {sT0}, v55
    """)
    for (base, ptr) in ((60, WG_), (92, WU)):
        for e in range(8): a(f"global_load_dwordx4 v[{base+4*e}:{base+4*e+3}], v{52+e//3}, {ptr} offset:{3584*(e%3-1)}")
    for e in range(8): a(f"global_load_dwordx4 v[{124+4*e}:{127+4*e}], v55, {WD} offset:{896*(e-4)}")
    a(f"""
    s_mov_b32 {sT2}, 0x05040100
    s_mov_b32 {sT3}, 0x07060302
    v_and_b32 v50, 1, v2
    v_lshlrev_b32 v50, 6, v50
    v_lshl_add_u32 v50, v3, 4, v50
    s_lshl_b32 {sT0}, {sWV}, 7
    v_add_u32 v50, {sT0}, v50
    v_lshrrev_b32 v56, 3, v2
    v_lshlrev_b32 v56, 4, v56
    v_lshl_add_u32 v56, v51, 1, v56
    s_lshl_b32 {sT1}, {sWV}, 9
    v_add_u32 v56, {sT1}, v56
    v_lshlrev_b32 v57, 2, v1
    v_lshl_add_u32 v58, v1, 1, {sT0}
    s_lshl_b32 {sT0}, s2, 13
    s_lshl_b32 {sT1}, {sWV}, 8
    s_add_u32 {sT0}, {sT0}, {sT1}
    v_add_u32 v59, {sT0}, v4
    s_waitcnt vmcnt(16)
    """)
    perms(60, 156); a("s_waitcnt vmcnt(8)"); perms(92, 188); a("s_waitcnt vmcnt(0)"); perms(124, 220)
    stamp(3)
    a(f"""
    s_barrier
    ds_read_b128 v[20:23], v50 offset:{FXN}
    s_waitcnt lgkmcnt(0)
    """)
    stamp(5)
    gemv(20, 156, 60, 0); gemv(20, 188, 92, 0)
    fold(60, 24); fold(92, 28)
    a(f"""
    s_mov_b64 exec, 0xffff
    ds_write_b128 v56, v[24:27] offset:{FGP}
    ds_write_b128 v56, v[28:31] offset:{FGP+256}
    s_mov_b64 exec, -1
    s_waitcnt lgkmcnt(0)
    s_barrier
    """)
    for p in range(7): a(f"ds_read2st64_b32 v[{24+2*p}:{25+2*p}], v57 offset0:{FGP//256+2*p} offset1:{FGP//256+2*p+1}")
    a(f"""
    s_waitcnt lgkmcnt(0)
    v_add_f32 v24, v24, v26
    v_add_f32 v25, v25, v27
    v_add_f32 v28, v28, v30
    v_add_f32 v29, v29, v31
    v_add_f32 v32, v32, v34
    v_add_f32 v33, v33, v35
    v_add_f32 v24, v24, v28
    v_add_f32 v25, v25, v29
    v_add_f32 v32, v32, v36
    v_add_f32 v33, v33, v37
    v_add_f32 v24, v24, v32
    v_add_f32 v25, v25, v33
    v_cvt_pk_bf16_f32 v24, v24, v25
    v_lshlrev_b32 v26, 16, v24
    v_and_b32 v25, {sHI}, v24
    v_mul_f32 v27, {hex(f2u(-1.4426950408889634))}, v26
    v_exp_f32 v27, v27
    v_add_f32 v27, 1.0, v27
    v_rcp_f32 v27, v27
    v_mul_f32 v26, v26, v27
    v_cvt_pk_bf16_f32 v26, 0, v26
    v_mul_f32 v26, v26, v25
    v_cvt_pk_bf16_f32 v26, v26, v26
    ds_write_b16 v58, v26 offset:{FH}
    ds_read_b128 v[20:23], v50 offset:{FH}
    s_waitcnt lgkmcnt(0)
    """)
    gemv(20, 220, 60, 0); fold(60, 24)
    a(f"""
    s_mov_b64 exec, 0xffff
    global_store_dwordx4 v59, v[24:27], {YB} sc1
    s_mov_b64 exec, -1
    """)
    stamp(7)
    a(f"""
    s_branch L_epi
    L_spare:""")
    role[0] = 'ffn7'
    a(f"""
    s_barrier
    s_branch L_epi
    L_ffn7:
    v_add_u32 v50, {WS_CAND}, v4
    s_not_b32 {sT3}, s39
    s_mov_b32 {sCNT}, 0
    s_waitcnt vmcnt(0)
    L_poll3:
    """)
    for i in range(4): a(f"global_load_dwordx4 v[{20+4*i}:{23+4*i}], v50, {WS} offset:{1024*i} sc1")
    a(f"""
    s_waitcnt vmcnt(0)
    v_xor_b32 v51, {sT3}, v23
    v_bitop3_b32 v51, v51, v27, {sT3} bitop3:0xf6
    v_bitop3_b32 v51, v51, v31, {sT3} bitop3:0xf6
    v_bitop3_b32 v51, v51, v35, {sT3} bitop3:0xf6
    v_cmp_ne_u32 vcc, 0, v51
    s_add_u32 {sCNT}, {sCNT}, 1
    s_cmp_ge_u32 {sCNT}, {SPIN}
    s_cbranch_scc1 L_poll3_done
    s_mov_b64 exec, vcc
    s_cbranch_execnz L_poll3
    L_poll3_done:
    s_mov_b64 exec, -1
    """)
    stamp(3)
    a(f"""
    s_cmp_ge_u32 {sFI}, 28
    s_cbranch_scc1 L_spare7
    v_max3_f32 v51, v20, v24, v28
    v_max_f32 v51, v51, v32
    v_cmp_eq_u32 vcc, v51, v24
    v_max_f32_dpp v52, v51, v51 row_ror:8 row_mask:0xf bank_mask:0xf
    v_cmp_eq_u32 s[62:63], v51, v28
    v_cndmask_b32 v21, v21, v25, vcc
    v_max_f32_dpp v52, v52, v52 row_ror:4 row_mask:0xf bank_mask:0xf
    v_cndmask_b32 v22, v22, v26, vcc
    v_cmp_eq_u32 vcc, v51, v32
    v_max_f32_dpp v52, v52, v52 row_ror:2 row_mask:0xf bank_mask:0xf
    v_cndmask_b32 v21, v21, v29, s[62:63]
    v_cndmask_b32 v22, v22, v30, s[62:63]
    v_max_f32_dpp v52, v52, v52 row_ror:1 row_mask:0xf bank_mask:0xf
    v_cndmask_b32 v21, v21, v33, vcc
    v_cndmask_b32 v22, v22, v34, vcc
    v_max_f32_dpp v52, v52, v52 row_bcast:15 row_mask:0xa bank_mask:0xf
    v_max_f32_dpp v52, v52, v52 row_bcast:31 row_mask:0xc bank_mask:0xf
    v_readlane_b32 {sP}, v52, 63
    s_and_b32 {sIDX}, {sP}, 0x7ff
    s_mul_i32 {sT0}, {sIDX}, 896
    v_add_u32 v53, {sT0}, v4
    s_mov_b32 exec_hi, 0x00ffffff
    global_load_dwordx4 v[10:13], v53, {X}
    s_mov_b32 exec_hi, -1
    v_cmp_eq_u32 vcc, {sP}, v51
    s_ff1_i32_b64 {sT1}, vcc
    s_and_b32 {sT1}, {sT1}, 63
    v_readlane_b32 {sT2}, v21, {sT1}
    v_readlane_b32 {sT3}, v22, {sT1}
    s_cmp_lg_u32 {sFI}, 0
    s_cbranch_scc1 L_noidx
    v_mov_b32 v54, {Y_IDX}
    v_mov_b32 v55, {sIDX}
    s_mov_b64 exec, 1
    global_store_dword v54, v55, {YB} sc1
    s_mov_b64 exec, -1
    s_waitcnt vmcnt(1)
    s_branch L_idx2
    L_noidx:
    s_waitcnt vmcnt(0)
    L_idx2:
    """)
    stamp(4)
    for i in range(4): a(f"v_lshlrev_b32 v{20+2*i}, 16, v{10+i}\nv_and_b32 v{21+2*i}, {sHI}, v{10+i}")
    for i in range(8): a(f"v_subrev_f32 v{20+i}, {sT2}, v{20+i}")
    for i in range(4): a(f"v_cvt_pk_bf16_f32 v{28+i}, v{20+2*i}, v{21+2*i}")
    for i in range(4): a(f"v_lshlrev_b32 v{20+2*i}, 16, v{28+i}\nv_and_b32 v{21+2*i}, {sHI}, v{28+i}")
    for i in range(8): a(f"v_mul_f32 v{20+i}, {sT3}, v{20+i}")
    for i in range(4): a(f"v_cvt_pk_bf16_f32 v{28+i}, v{20+2*i}, v{21+2*i}")
    a(f"""
    ds_write_b128 v4, v[28:31] offset:{FXN}
    ds_write_b128 v4, v[10:13] offset:{FXR}
    s_waitcnt lgkmcnt(0)
    s_barrier
    s_and_b32 {sT1}, {sFI}, 3
    s_lshl_b32 {sT1}, {sT1}, 2
    v_lshrrev_b32 v50, 2, v2
    v_add_u32 v50, {sT1}, v50
    v_and_b32 v51, 7, v50
    v_lshrrev_b32 v50, 3, v50
    v_lshlrev_b32 v51, 3, v51
    v_lshl_add_u32 v50, v50, 2, v51
    v_and_b32 v51, 3, v2
    s_lshr_b32 {sT1}, {sFI}, 2
    s_lshl_b32 {sT1}, {sT1}, 6
    v_add3_u32 v50, v50, v51, {sT1}
    v_lshlrev_b32 v51, 1, v50
    global_load_ushort v40, v51, {DSK}
    ds_read_u16 v41, v51 offset:{FXN}
    ds_read_u16 v42, v51 offset:{FXR}
    v_add_u32 v53, {sT0}, v51
    v_lshrrev_b32 v52, 1, v50
    v_and_b32 v50, 1, v50
    v_lshlrev_b32 v52, 13, v52
    v_lshl_add_u32 v52, v50, 4, v52
    s_lshr_b32 {sT1}, {sIDX}, 3
    s_lshl_b32 {sT1}, {sT1}, 5
    s_and_b32 {sT2}, {sIDX}, 6
    s_lshl_b32 {sT2}, {sT2}, 1
    s_add_u32 {sT1}, {sT1}, {sT2}
    v_add_u32 v52, {sT1}, v52
    v_lshlrev_b32 v54, 13, v3
    v_lshl_add_u32 v54, v2, 2, v54
    s_lshl_b32 {sT1}, {sFI}, 6
    s_add_u32 {sT1}, {sT1}, {Y_PART}
    v_add_u32 v54, {sT1}, v54
    """)
    for p in range(1, 7): a(f"v_add_u32 v{54+p}, {32768*p}, v54")
    a(f"""
    s_and_b32 {sT1}, {sP}, {sHI}
    v_mov_b32 v43, {sT1}
    v_mul_f32 v43, {hex(f2u(-1.4426950408889634))}, v43
    v_exp_f32 v43, v43
    v_add_f32 v43, 1.0, v43
    v_rcp_f32 v43, v43
    v_cvt_pk_bf16_f32 v43, 0, v43
    s_waitcnt vmcnt(0) lgkmcnt(0)
    v_lshlrev_b32 v40, 16, v40
    v_lshlrev_b32 v41, 16, v41
    v_lshlrev_b32 v42, 16, v42
    v_mul_f32 v40, v40, v41
    v_cvt_pk_bf16_f32 v40, 0, v40
    s_barrier
    s_mov_b32 {sCNT}, 0
    L_poll4:
    """)
    for p in range(7): a(f"global_load_dword v{20+p}, v{54+p}, {YB} sc1")
    a(f"""
    global_load_dword v27, v52, {YB} sc1
    s_waitcnt vmcnt(0)
    v_max3_u32 v28, v20, v21, v22
    v_max3_u32 v29, v23, v24, v25
    v_max3_u32 v28, v28, v26, v27
    v_max_u32 v28, v28, v29
    v_cmp_eq_u32 vcc, -1, v28
    s_add_u32 {sCNT}, {sCNT}, 1
    s_cmp_ge_u32 {sCNT}, {SPIN}
    s_cbranch_scc1 L_poll4_done
    s_mov_b64 exec, vcc
    s_cbranch_execnz L_poll4
    L_poll4_done:
    s_mov_b64 exec, -1
    """)
    stamp(8)
    a(f"""
    v_add_f32 v20, v20, v21
    v_add_f32 v22, v22, v23
    v_add_f32 v24, v24, v25
    v_add_f32 v20, v20, v26
    v_add_f32 v22, v22, v24
    s_bitcmp1_b32 {sIDX}, 0
    s_cselect_b32 {sT1}, 0, 16
    v_add_f32 v20, v20, v22
    v_lshlrev_b32 v27, {sT1}, v27
    v_mov_b32 v21, v20
    v_and_b32 v27, {sHI}, v27
    v_permlane32_swap_b32 v20, v21
    v_add_f32 v20, v20, v21
    v_add_f32 v27, v27, v40
    v_mov_b32 v21, v20
    v_cvt_pk_bf16_f32 v27, 0, v27
    v_permlane16_swap_b32 v20, v21
    v_add_f32 v20, v20, v21
    v_add_f32 v27, v27, v42
    v_cvt_pk_bf16_f32 v20, 0, v20
    v_cvt_pk_bf16_f32 v27, 0, v27
    v_mul_f32 v20, v20, v43
    v_cvt_pk_bf16_f32 v20, 0, v20
    v_add_f32 v20, v20, v41
    v_cvt_pk_bf16_f32 v20, 0, v20
    v_add_f32 v20, v20, v27
    v_cvt_pk_bf16_f32 v20, v20, v20
    s_mov_b64 exec, 0xffff
    global_store_short v53, v20, {OUT}
    s_mov_b64 exec, -1
    s_branch L_fin
    L_spare7:
    s_barrier
    L_fin:
    """)
    if diag:
        a("s_waitcnt vmcnt(0)")
        stamp(9)
        a(f"""
        s_lshl_b32 {sT0}, s2, 3
        s_add_u32 {sT0}, {sT0}, {sWV}
        s_lshl_b32 {sT0}, {sT0}, 6
        s_add_u32 {sT0}, {sT0}, {WS_STAMP}
        v_mov_b32 v50, {sT0}
        """)
        for i in range(10): a(f"v_mov_b32 v{20+i}, s{64+2*i}")
        a(f"v_mov_b32 v30, {sCNT}\nv_mov_b32 v31, 0\ns_mov_b64 exec, 1")
        for i in range(3): a(f"global_store_dwordx4 v50, v[{20+4*i}:{23+4*i}], {WS} offset:{16*i}")
        if opt.get("dbg"):
            a(f"""
            s_load_dwordx2 s[62:63], s[0:1], 104
            s_mov_b64 exec, -1
            v_mov_b32 v40, 0
            s_not_b32 {sT0}, s64
            v_writelane_b32 v40, {sT0}, 0
            s_cmp_ge_u32 s2, 224
            s_cbranch_scc1 L_dbg_ffn
            """)
            for i in range(10): a(f"v_writelane_b32 v40, s{64+2*i}, {1+i}")
            a(f"s_cmp_eq_u32 {sWV}, 0\ns_branch L_dbg2\nL_dbg_ffn:")
            for n, i in enumerate((3, 4, 8, 9)): a(f"v_writelane_b32 v40, s{64+2*i}, {11+n}")
            a(f"s_cmp_ge_u32 s2, 252\ns_cbranch_scc1 L_end\ns_cmp_eq_u32 {sWV}, 7\nL_dbg2:\ns_cbranch_scc0 L_end")
            a(f"v_lshlrev_b32 v41, 2, v1\ns_waitcnt lgkmcnt(0)\ns_mov_b64 exec, 0xffff\nglobal_atomic_umax v41, v40, s[62:63]")
    if opt.get("hold"):
        a(f"""
        L_hold:
        s_memrealtime s[66:67]
        s_waitcnt lgkmcnt(0)
        s_sub_u32 s66, s66, s64
        s_cmp_lt_u32 s66, {opt['hold']}
        s_cbranch_scc1 L_hold
        """)
    a("L_end:\ns_endpgm\nL_code_end:")
    rep = []
    body = hz.fix(a.text(), rep)
    if opt.get("verbose"):
        for r in rep: print("nop", r)
    return single_file(body, 256, 512, LDS_BYTES, 256, sgpr=96)

if __name__ == "__main__":
    open("k_diag.s", "w").write(gen({"diag": True}))
    open("k.s", "w").write(gen({"verbose": "-v" in sys.argv}))
    open("h_start.s", "w").write(gen({"hold": 2000}))
    for nm, h in dict(rows=("all",1), pub=("all",2), kgen=("conv",3), tbl=("conv",4), hop1=("conv",5), conv=("conv",6), hop2=("all",8),
                      wts=("ffn",3), cand=("ffn7",3), xrow=("ffn7",4), part=("ffn",7), parts=("ffn7",8)).items():
        open(f"h_{nm}.s", "w").write(gen({"hold": 2000, "holdat": h}))
```

```python
import sys, struct
from asmlib import *
import hz

def f2u(x): return struct.unpack("<I", struct.pack("<f", x))[0]

WS_E    = 0x0
WS_CAND = 0x1000
WS_XN   = 0x100000
WS_Y    = 0x300000
Y_PART  = 224 * 8192
Y_IDX   = Y_PART + 4096
WS_STAMP= 0x800000
RS    = 1040
CHS   = 53 * RS
LNX   = 110336
LNN   = LNX + 7680
CANDL = LNN + 7680
ZB    = CANDL + 128
KC    = ZB + 16
KCS   = 1568
TT    = 129024
TCS   = 2240
TTS   = 4 * TCS
U     = TT + 2 * TTS
US    = 4672
LDS_BYTES = ZB + 32768
YL    = 0
YP    = 16384
FXN = 0; FXR = 1024; FGP = 2048; FH = 8192
TAGM = 0x60006000
BIAS = (68 << 7) * 0x10001
SPIN = 200000

def gen(opt):
    diag = opt.get("diag", False)
    a = Asm()
    nst = [0]
    role = ["all"]
    def stamp(i):
        if diag: a(f"s_memrealtime s[{64+2*i}:{65+2*i}]\ns_waitcnt lgkmcnt(0)")
        elif opt.get("holdat") == (role[0], i): a(f"s_memrealtime s[64:65]\ns_waitcnt lgkmcnt(0)")
    sWV="s3"; sTB="s6"; sPR="s7"; sCH="s40"; sQ="s41"; sHI="s42"; sP="s43"; sT0="s44"; sT1="s45"; sT2="s46"; sT3="s47"
    sLD="s48"; sIDX="s49"; sCNT="s50"; sFI="s51"; sDEC=52
    sMSK=56
    X="s[8:9]"; LOGA="s[10:11]"; AIM="s[12:13]"; CRE="s[14:15]"; CIM="s[16:17]"; LDT="s[18:19]"; DSK="s[20:21]"
    WR="s[24:25]"; WG_="s[26:27]"; WU="s[28:29]"; WD="s[30:31]"; OUT="s[32:33]"; WS="s[34:35]"
    YB="s[22:23]"; XNB="s[60:61]"
    if diag or opt.get("hold"): a("s_memrealtime s[64:65]")
    a(f"""
    s_cmp_ge_u32 s2, 256
    s_cbranch_scc1 L_end
    s_load_dwordx16 s[8:23], s[0:1], 0
    s_load_dwordx8 s[24:31], s[0:1], 64
    s_load_dwordx2 {OUT}, s[0:1], 96
    s_load_dwordx2 {WS}, s[0:1], 112
    s_getpc_b64 s[4:5]
    L_pc:
    v_lshrrev_b32 v2, 6, v0
    v_lshrrev_b32 v3, 2, v0
    v_readfirstlane_b32 {sWV}, v2
    v_lshlrev_b32 v3, 7, v3
    v_min_u32 v3, L_code_end-L_pc-4, v3
    global_load_dword v9, v3, s[4:5]
    v_and_b32 v1, 63, v0
    s_and_b32 {sT0}, s2, 7
    s_lshr_b32 {sT1}, s2, 3
    s_lshl_b32 {sTB}, {sT0}, 5
    s_add_u32 {sTB}, {sTB}, {sT1}
    s_mul_i32 {sPR}, {sT0}, 28
    s_add_u32 {sPR}, {sPR}, {sT1}
    s_lshl_b32 {sT2}, {sTB}, 3
    s_add_u32 {sT2}, {sT2}, {sWV}
    s_mul_i32 {sT3}, {sT2}, 896
    v_lshlrev_b32 v4, 4, v1
    v_add_u32 v5, {sT3}, v4
    s_bfe_u32 {sCH}, {sWV}, 0x10001
    s_and_b32 {sQ}, {sWV}, 1
    s_cmp_ge_u32 {sWV}, 4
    s_cselect_b32 {sT0}, 3, 0
    s_xor_b32 {sQ}, {sQ}, {sT0}
    s_sub_u32 {sFI}, s2, 224
    v_mov_b32 v36, -1
    v_mov_b32 v37, -1
    v_mov_b32 v38, -1
    v_mov_b32 v39, -1
    v_lshlrev_b32 v6, 4, v0
    s_cmp_ge_u32 s2, 224
    s_cselect_b32 {sT0}, s2, {sPR}
    s_lshl_b32 {sT0}, {sT0}, 13
    v_add_u32 v7, {sT0}, v6
    s_mov_b32 exec_hi, 0x00ffffff
    s_waitcnt lgkmcnt(0)
    global_load_dwordx4 v[10:13], v5, {X}
    s_mov_b32 exec_hi, -1
    s_load_dwordx4 s[36:39], {WS}, {WS_E}
    s_add_u32 s22, s34, {WS_Y}
    s_addc_u32 s23, s35, 0
    s_add_u32 s60, s34, {WS_XN}
    s_addc_u32 s61, s35, 0
    global_store_dwordx4 v7, v[36:39], {YB} sc1
    s_mov_b32 exec_hi, 0x00ffffff
    global_load_dwordx4 v[14:17], v4, {WR}
    s_mov_b32 exec_hi, -1
    s_cmp_ge_u32 s2, 224
    s_cbranch_scc1 L_pro_ffn
    """)
    a(f"""
    s_lshl_b32 {sT0}, {sPR}, 1
    s_add_u32 {sT0}, {sT0}, {sCH}
    s_lshl_b32 {sT0}, {sT0}, 9
    s_lshl_b32 {sT1}, {sQ}, 7
    s_add_u32 {sT0}, {sT0}, {sT1}
    v_lshl_add_u32 v8, v1, 1, {sT0}
    global_load_ushort v40, v8, {LOGA}
    global_load_ushort v41, v8, {AIM}
    global_load_ushort v42, v8, {CRE}
    global_load_ushort v43, v8, {CIM}
    s_lshl_b32 {sT0}, {sPR}, 2
    s_load_dword {sLD}, {LDT}, {sT0}
    """)
    a(f"""
    v_mov_b32 v44, 0
    v_mov_b32 v45, 0
    v_mov_b32 v46, 0
    v_mov_b32 v47, 0
    v_add_u32 v48, {ZB}, v6
    ds_write_b128 v48, v[44:47]
    ds_write_b128 v48, v[44:47] offset:8192
    ds_write_b128 v48, v[44:47] offset:16384
    ds_write_b128 v48, v[44:47] offset:24576
    """)
    a(f"""
    s_lshl_b32 {sT0}, {sQ}, 8
    s_sub_u32 {sT0}, 1023, {sT0}
    v_lshlrev_b32 v50, 2, v1
    v_sub_u32 v50, {sT0}, v50
    s_mul_i32 {sT1}, {sCH}, {KCS}
    s_add_u32 {sT1}, {sT1}, {KC}
    s_movk_i32 {sT2}, 0x4280
    s_movk_i32 {sT3}, 128
    """)
    for i in range(7):
        a(f"""
        v_subrev_u32 v51, {i}, v50
        v_max_i32 v52, 0, v51
        v_cvt_f32_u32 v52, v52
        v_min_i32 v51, {sT3}, v51
        v_cvt_pk_bf16_f32 v52, v52, 0
        v_subrev_u32 v52, {sT2}, v52
        v_max_i32 v51, v51, v52
        v_lshl_add_u32 v{100+i}, v51, 1, {sT1}
        """)
    a(f"""
    s_mul_i32 {sT2}, {sCH}, {TTS}
    s_add_u32 {sT2}, {sT2}, {TT}
    s_lshl_b32 {sT3}, {sQ}, 9
    s_add_u32 {sT3}, {sT3}, {sT2}
    s_add_u32 {sT3}, {sT3}, 64
    v_lshl_add_u32 v107, v1, 3, {sT3}
    v_and_b32 v2, 15, v1
    v_lshrrev_b32 v3, 4, v1
    v_add_u32 v51, v2, v3
    v_mov_b32 v52, 511
    v_cmp_gt_u32 vcc, 18, v51
    v_addc_co_u32 v52, vcc, 0, v52, vcc
    v_cmp_gt_u32 vcc, 11, v51
    v_addc_co_u32 v52, vcc, 0, v52, vcc
    v_cmp_le_u32 vcc, 4, v51
    v_cndmask_b32 v52, -1, v52, vcc
    v_lshl_add_u32 v108, v52, 1, {sT1}
    v_mul_u32_u24 v51, {TCS}, v3
    v_lshl_add_u32 v51, v2, 1, v51
    v_add3_u32 v109, v51, {sT2}, 32
    v_sub_u32 v51, 15, v2
    v_and_b32 v52, 3, v51
    v_sub_u32 v51, v51, v52
    v_lshl_add_u32 v51, v3, 3, v51
    v_mul_u32_u24 v52, {TCS}, v52
    v_lshl_add_u32 v51, v51, 1, v52
    v_add_u32 v110, {sT2}, v51
    s_mul_i32 {sT0}, {sCH}, {US}
    s_lshl_b32 {sT3}, {sQ}, 10
    s_add_u32 {sT0}, {sT0}, {sT3}
    s_add_u32 {sT0}, {sT0}, {U + 448 - 2048}
    v_lshlrev_b32 v51, 5, v2
    v_lshl_add_u32 v51, v3, 4, v51
    v_add_u32 v111, {sT0}, v51
    s_mul_i32 {sT0}, {sCH}, {CHS}
    s_lshl_b32 {sT3}, {sQ}, 8
    s_add_u32 {sT0}, {sT0}, {sT3}
    s_mov_b32 m0, {sT0}
    v_and_b32 v51, 31, v1
    v_lshrrev_b32 v52, 5, v1
    v_mul_u32_u24 v53, {RS}, v51
    v_lshl_add_u32 v53, v52, 4, v53
    v_add_u32 v112, {sT0}, v53
    v_mul_u32_u24 v53, {RS}, v3
    v_lshl_add_u32 v53, v2, 4, v53
    v_add_u32 v113, {sT0}, v53
    s_and_b32 {sT0}, {sWV}, 1
    s_lshr_b32 {sT3}, {sWV}, 1
    s_mul_i32 {sT1}, {sT0}, {CHS}
    s_mul_i32 {sT2}, {sT3}, {4*RS}
    s_add_u32 {sT1}, {sT1}, {sT2}
    v_add_u32 v114, {sT1}, v53
    s_mul_i32 {sT0}, {sT0}, {KCS}
    s_lshl_b32 {sT1}, {sT3}, 9
    s_add_u32 {sT0}, {sT0}, {sT1}
    s_add_u32 {sT0}, {sT0}, {KC}
    s_cmp_eq_u32 {sT3}, 0
    s_cselect_b32 {sT1}, 3, 8
    v_lshlrev_b32 v53, {sT1}, v52
    s_cselect_b32 {sT1}, 4, 1
    s_cselect_b32 {sT2}, 4, 128
    s_cmp_eq_u32 {sT3}, 1
    s_cselect_b32 {sT1}, 3, {sT1}
    s_cselect_b32 {sP}, 1, 0
    v_and_b32 v54, {sP}, v52
    v_sub_u32 v54, {sT1}, v54
    v_lshlrev_b32 v54, v54, v51
    v_add3_u32 v115, v53, v54, {sT0}
    s_cmp_eq_u32 {sT3}, 2
    s_cselect_b32 {sT0}, 64, 2
    s_cselect_b32 {sT1}, 128, 4
    v_mov_b32 v53, {sT1}
    v_mov_b32 v54, {sT2}
    v_cmp_eq_u32 vcc, 0, v52
    v_cndmask_b32 v53, v54, v53, vcc
    v_add_u32 v116, {sT0}, v115
    v_add_u32 v117, v53, v115
    v_add_u32 v118, {sT0}, v117
    s_branch L_ln
    """)
    a(f"""
    L_pro_ffn:
    global_load_dword v40, v3, s[4:5]
    global_load_dword v41, v3, s[4:5]
    global_load_dword v42, v3, s[4:5]
    global_load_dword v43, v3, s[4:5]
    v_and_b32 v2, 15, v1
    v_lshrrev_b32 v3, 4, v1
    """)
    a(f"""
    L_ln:
    s_mov_b32 {sHI}, 0xffff0000
    s_mul_i32 {sT0}, {sWV}, 960
    s_add_u32 {sT0}, {sT0}, {LNX}
    v_add_u32 v18, {sT0}, v4
    v_mov_b32 v44, 0
    v_mov_b32 v45, 0
    v_mov_b32 v46, 0
    v_and_b32 v50, 0x1f0, v0
    v_and_b32 v51, 3, v0
    v_lshlrev_b32 v50, 1, v50
    v_lshl_add_u32 v50, v51, 3, v50
    v_bfe_u32 v51, v0, 2, 2
    v_mul_u32_u24 v51, 960, v51
    v_add_u32 v50, v50, v51
    v_add_u32 v19, {LNX}, v50
    s_mul_i32 {sT0}, {sTB}, 7168
    v_add_u32 v49, {sT0}, v6
    s_waitcnt lgkmcnt(0)
    """)
    for i in range(4):
        a(f"s_andn2_b32 s{sMSK+i}, {TAGM}, s{36+i}\ns_sub_u32 s{sDEC+i}, {BIAS}, s{sMSK+i}")
    a("s_mov_b32 exec_hi, 0x00ffffff\ns_waitcnt vmcnt(6)")
    stamp(1)
    for i in range(4):
        a(f"v_lshlrev_b32 v{20+2*i}, 16, v{10+i}\nv_and_b32 v{21+2*i}, {sHI}, v{10+i}")
    a(f"v_readfirstlane_b32 {sP}, v20\nds_write_b128 v18, v[10:13]")
    for i in range(8): a(f"v_subrev_f32 v{28+i}, {sP}, v{20+i}")
    a(f"""
    v_add_f32 v44, v28, v29
    v_mul_f32 v45, v28, v28
    v_add_f32 v50, v30, v31
    v_mul_f32 v51, v29, v29
    v_add_f32 v52, v32, v33
    v_fmac_f32 v45, v30, v30
    v_add_f32 v53, v34, v35
    v_fmac_f32 v51, v31, v31
    v_add_f32 v44, v44, v50
    v_fmac_f32 v45, v32, v32
    v_add_f32 v52, v52, v53
    v_fmac_f32 v51, v33, v33
    v_fmac_f32 v45, v34, v34
    v_fmac_f32 v51, v35, v35
    v_add_f32 v44, v44, v52
    v_add_f32 v45, v45, v51
    s_mov_b32 exec_hi, -1
    v_permlane32_swap_b32 v44, v45
    v_add_f32 v44, v44, v45
    v_add_f32_dpp v44, v44, v44 row_ror:8 row_mask:0xf bank_mask:0xf
    v_add_f32_dpp v44, v44, v44 row_ror:4 row_mask:0xf bank_mask:0xf
    v_add_f32_dpp v44, v44, v44 row_ror:2 row_mask:0xf bank_mask:0xf
    v_add_f32_dpp v44, v44, v44 row_ror:1 row_mask:0xf bank_mask:0xf
    v_add_f32_dpp v44, v44, v44 row_bcast:15 row_mask:0xa bank_mask:0xf
    v_mul_f32 v44, {hex(f2u(1.0/448))}, v44
    v_readlane_b32 {sT0}, v44, 16
    v_readlane_b32 {sT1}, v44, 48
    v_mov_b32 v50, {sT0}
    v_fma_f32 v51, -v50, v50, {sT1}
    v_add_f32 v50, {sP}, v50
    v_max_f32 v51, 0, v51
    v_cvt_pk_bf16_f32 v50, v50, v51
    v_and_b32 v51, {sHI}, v50
    v_lshlrev_b32 v57, 16, v50
    v_add_f32 v51, {hex(f2u(1e-5))}, v51
    v_sub_f32 v20, v20, v57
    v_cvt_pk_bf16_f32 v51, 0, v51
    v_sub_f32 v21, v21, v57
    v_sqrt_f32 v51, v51
    v_sub_f32 v22, v22, v57
    v_sub_f32 v23, v23, v57
    v_cvt_pk_bf16_f32 v51, 0, v51
    v_sub_f32 v24, v24, v57
    v_rcp_f32 v58, v51
    v_sub_f32 v25, v25, v57
    v_sub_f32 v26, v26, v57
    v_sub_f32 v27, v27, v57
    v_mul_f32 v52, {hex(f2u(2.0**-68))}, v58
    """)
    for i in range(4): a(f"v_cvt_pk_bf16_f32 v{28+i}, v{20+2*i}, v{21+2*i}")
    for i in range(4): a(f"v_lshlrev_b32 v{20+2*i}, 16, v{28+i}\nv_and_b32 v{21+2*i}, {sHI}, v{28+i}")
    for i in range(8): a(f"v_mul_f32 v{20+i}, v52, v{20+i}")
    for i in range(4): a(f"v_cvt_pk_bf16_f32 v{28+i}, v{20+2*i}, v{21+2*i}")
    a(f"""
    s_mov_b32 exec_hi, 0x00ffffff
    ds_write_b128 v18, v[28:31] offset:7680
    s_mov_b32 {sT0}, {BIAS}
    """)
    for i in range(4): a(f"v_add_u32 v{32+i}, {sT0}, v{28+i}")
    a("s_waitcnt vmcnt(4)")
    for i in range(4): a(f"v_dot2c_f32_bf16 v46, v{32+i}, v{14+i}")
    a(f"""
    s_mov_b32 exec_hi, -1
    s_waitcnt lgkmcnt(0)
    s_barrier
    s_cmp_eq_u32 {sWV}, 7
    s_cbranch_scc1 L_nogran
    ds_read_b64_tr_b16 v[20:21], v19 offset:7680
    ds_read_b64_tr_b16 v[22:23], v19 offset:{7680+3840}
    L_nogran:
    v_add_f32_dpp v46, v46, v46 row_ror:8 row_mask:0xf bank_mask:0xf
    v_add_f32_dpp v46, v46, v46 row_ror:4 row_mask:0xf bank_mask:0xf
    v_add_f32_dpp v46, v46, v46 row_ror:2 row_mask:0xf bank_mask:0xf
    v_add_f32_dpp v46, v46, v46 row_ror:1 row_mask:0xf bank_mask:0xf
    s_cbranch_scc1 L_nogran2
    s_waitcnt lgkmcnt(0)
    """)
    for i in range(4): a(f"v_or_b32 v{20+i}, s{sMSK+i}, v{20+i}")
    a(f"""
    global_store_dwordx4 v49, v[20:23], {XNB} sc1
    L_nogran2:
    s_nop 0
    v_add_f32_dpp v46, v46, v46 row_bcast:15 row_mask:0xa bank_mask:0xf
    s_lshl_b32 {sT2}, {sTB}, 3
    s_add_u32 {sT2}, {sT2}, {sWV}
    v_add_f32_dpp v46, v46, v46 row_bcast:31 row_mask:0xc bank_mask:0xf
    s_lshl_b32 {sT0}, {sWV}, 4
    s_add_u32 {sT0}, {sT0}, {CANDL}
    v_cvt_pk_bf16_f32 v46, 0, v46
    v_mov_b32 v50, {sT0}
    v_or_b32 v56, {sT2}, v46
    s_not_b32 {sT1}, s39
    v_mov_b32 v59, {sT1}
    s_mov_b32 exec_lo, 0
    s_mov_b32 exec_hi, 0x80000000
    ds_write_b128 v50, v[56:59]
    s_mov_b64 exec, -1
    s_waitcnt lgkmcnt(0)
    s_barrier
    """)
    stamp(2)
    a(f"""
    s_cmp_lg_u32 {sWV}, 7
    s_cbranch_scc1 L_nocand
    v_and_b32 v50, 7, v1
    v_lshlrev_b32 v50, 4, v50
    v_add_u32 v50, {CANDL}, v50
    ds_read_b128 v[56:59], v50
    s_lshl_b32 {sT0}, {sTB}, 4
    s_add_u32 {sT0}, {sT0}, {WS_CAND}
    v_mov_b32 v51, {sT0}
    s_waitcnt lgkmcnt(0)
    v_max_f32_dpp v50, v56, v56 row_ror:4 row_mask:0xf bank_mask:0xf
    v_max_f32_dpp v50, v50, v50 row_ror:2 row_mask:0xf bank_mask:0xf
    v_max_f32_dpp v50, v50, v50 row_ror:1 row_mask:0xf bank_mask:0xf
    v_cmp_eq_u32 vcc, v50, v56
    s_and_b32 exec_lo, vcc_lo, 0xff
    s_mov_b32 exec_hi, 0
    global_store_dwordx4 v51, v[56:59], {WS} sc1
    s_mov_b64 exec, -1
    L_nocand:
    s_cmp_ge_u32 s2, 224
    s_cbranch_scc1 L_ffn
    """)
    role[0] = 'conv'
    LOG2E = hex(f2u(1.4426950408889634))
    a(f"""
    s_lshl_b32 {sT0}, {sLD}, 16
    s_and_b32 {sT1}, {sLD}, {sHI}
    s_cmp_eq_u32 {sCH}, 0
    s_cselect_b32 {sT0}, {sT0}, {sT1}
    s_mov_b32 {sT1}, {LOG2E}
    v_mov_b32 v50, {sT0}
    v_mul_f32 v50, {sT1}, v50
    s_waitcnt vmcnt(1)
    v_lshlrev_b32 v40, 16, v40
    v_exp_f32 v50, v50
    v_mul_f32 v40, {sT1}, v40
    v_lshlrev_b32 v41, 16, v41
    v_exp_f32 v40, v40
    v_cvt_pk_bf16_f32 v50, 0, v50
    v_lshlrev_b32 v42, 16, v42
    v_lshlrev_b32 v43, 16, v43
    v_cvt_pk_bf16_f32 v40, 0, v40
    v_mul_f32 v41, v50, v41
    v_add_f32 v51, v50, v50
    v_mul_f32 v40, v50, v40
    v_mul_f32 v41, 0.15915494, v41
    v_mul_f32 v40, {hex(f2u(-1.4426950408889634))}, v40
    v_mul_f32 v42, v51, v42
    v_mul_f32 v43, v51, v43
    """)
    for (p, r, t) in ((1, 60, 20), (8, 63, 24), (128, 66, 28)):
        if p == 1: a(f"v_exp_f32 v{t}, v40\nv_fract_f32 v{t+1}, v41")
        else: a(f"v_mul_f32 v{t}, {hex(f2u(p))}, v40\nv_mul_f32 v{t+1}, {hex(f2u(p))}, v41\nv_exp_f32 v{t}, v{t}\nv_fract_f32 v{t+1}, v{t+1}")
    for (p, r, t) in ((1, 60, 20), (8, 63, 24), (128, 66, 28)):
        a(f"v_cos_f32 v{t+2}, v{t+1}\nv_sin_f32 v{t+3}, v{t+1}")
    for (p, r, t) in ((1, 60, 20), (8, 63, 24), (128, 66, 28)):
        a(f"v_mul_f32 v{r}, v{t}, v{t+2}\nv_mul_f32 v{r+1}, v{t}, v{t+3}")
    for r in (60, 63, 66): a(f"v_sub_f32 v{r+2}, 0, v{r+1}")
    tmp = [0]
    def put(row, re, im, conj):
        t = 52 + tmp[0] % 4; tmp[0] += 1
        return [f"v_cvt_pk_bf16_f32 v{t}, v{re}, {'-' if conj else ''}v{im}", f"ds_write_addtid_b32 v{t} offset:{row*RS}"]
    def cmul(d, x, w):
        return [f"v_mul_f32 v{d}, v{x}, v{w}", f"v_mul_f32 v{d+1}, v{x}, v{w+1}",
                f"v_fmac_f32 v{d}, v{x+1}, v{w+2}", f"v_fmac_f32 v{d+1}, v{x+1}, v{w}"]
    def inter(x, y):
        for i in range(max(len(x), len(y))):
            if i < len(x): a(x[i])
            if i < len(y): a(y[i])
    G0 = 21
    inter(cmul(69, 66, 66) + ["v_sub_f32 v71, 0, v70"], cmul(72, 60, 60) + ["v_sub_f32 v74, 0, v73"])
    inter(cmul(75, 72, 72) + ["v_sub_f32 v77, 0, v76"], ["v_mov_b32 v51, 0x3f80", f"ds_write_addtid_b32 v51 offset:{G0*RS}"] + put(0, 42, 43, True))
    inter(put(G0 + 1, 63, 64, False), put(G0 + 16, 66, 67, False))
    ga = []; src = 63
    for j in range(2, 16):
        d = 20 + 2 * (j & 1); ga.append((d, src, 63, G0 + j, False)); src = d
    gb = []; src = 66
    for j in range(17, 32):
        d = 24 + 2 * (j & 1); gb.append((d, src, 63, G0 + j, False)); src = d
    fa = []; src = 42
    for h in range(1, 8):
        d = 28 + 2 * (h & 1); fa.append((d, src, 60, h, True)); src = d
    fb = [(80, 42, 69, 8, True), (82, 80, 69, 12, True), (84, 82, 69, 14, True)]
    src = 84
    for k in range(5):
        d = 32 + 2 * (k & 1); fb.append((d, src, 69, 16 + k, True)); src = d
    fc = [(28, 80, 72, 9, True), (30, 28, 72, 10, True), (28, 30, 72, 11, True), (30, 82, 75, 13, True), (28, 84, 75, 15, True)]
    A_ = ga + fa + fc[:3]
    B_ = fb + gb + [(32, 82, 75, 13, True), (34, 84, 75, 15, True)]
    for i in range(max(len(A_), len(B_))):
        xs = []
        for L in (A_, B_):
            if i < len(L):
                d, s_, w, row, cj = L[i]
                xs.append(cmul(d, s_, w) + put(row, d, d + 1, cj))
            else: xs.append([])
        inter(xs[0], xs[1])
    stamp(3)
    for st in range(8):
        a(f"ds_read_b128 v[{120+8*st}:{123+8*st}], v112 offset:{32*st}")
        a(f"ds_read_b128 v[{124+8*st}:{127+8*st}], v112 offset:{G0*RS+32*st}")
        if st >= 4:
            s2_ = st - 4
            a(f"s_waitcnt lgkmcnt(8)")
            a(f"v_mfma_f32_32x32x16_bf16 v[20:35], v[{120+8*s2_}:{123+8*s2_}], v[{124+8*s2_}:{127+8*s2_}], {'0' if s2_==0 else 'v[20:35]'}")
    for s2_ in range(4, 8):
        a(f"s_waitcnt lgkmcnt({2*(7-s2_)})")
        a(f"v_mfma_f32_32x32x16_bf16 v[20:35], v[{120+8*s2_}:{123+8*s2_}], v[{124+8*s2_}:{127+8*s2_}], v[20:35]")
    for s_ in range(3): a(f"ds_write_b128 v113, v[{20+4*s_}:{23+4*s_}] offset:{4*RS*s_}")
    a(f"""
    s_waitcnt lgkmcnt(0)
    s_barrier
    s_cmp_ge_u32 {sWV}, 6
    s_cbranch_scc1 L_noR
    """)
    for nq in range(4): a(f"ds_read_b128 v[{20+4*nq}:{23+4*nq}], v114 offset:{256*nq}")
    a("s_waitcnt lgkmcnt(2)")
    for i in range(4): a(f"v_add_f32 v{20+i}, v{20+i}, v{24+i}")
    a("s_waitcnt lgkmcnt(0)")
    for i in range(4): a(f"v_add_f32 v{28+i}, v{28+i}, v{32+i}")
    for i in range(4): a(f"v_add_f32 v{20+i}, v{20+i}, v{28+i}")
    a(f"""
    v_cvt_pk_bf16_f32 v20, v20, v21
    v_cvt_pk_bf16_f32 v22, v22, v23
    ds_write_b16 v115, v20
    ds_write_b16_d16_hi v116, v20
    ds_write_b16 v117, v22
    ds_write_b16_d16_hi v118, v22
    s_waitcnt lgkmcnt(0)
    L_noR:
    s_barrier
    """)
    for i in range(7): a(f"ds_read_u16 v{20+i}, v{100+i}")
    a(f"""
    ds_read_u16 v27, v108
    s_waitcnt lgkmcnt(4)
    v_lshl_or_b32 v28, v21, 16, v20
    v_lshl_or_b32 v29, v23, 16, v22
    v_lshl_or_b32 v30, v22, 16, v21
    v_lshl_or_b32 v32, v23, 16, v22
    ds_write_b64 v107, v[28:29]
    s_waitcnt lgkmcnt(2)
    v_lshl_or_b32 v31, v24, 16, v23
    v_lshl_or_b32 v33, v25, 16, v24
    v_lshl_or_b32 v34, v24, 16, v23
    v_lshl_or_b32 v35, v26, 16, v25
    ds_write_b64 v107, v[30:31] offset:{TCS}
    ds_write_b64 v107, v[32:33] offset:{2*TCS}
    ds_write_b64 v107, v[34:35] offset:{3*TCS}
    s_waitcnt lgkmcnt(4)
    ds_write_b16 v109, v27
    v_lshrrev_b32 v52, 1, v0
    v_and_b32 v53, 1, v0
    v_mul_u32_u24 v50, 7168, v52
    v_lshl_add_u32 v50, v53, 4, v50
    s_lshl_b32 {sT0}, {sPR}, 5
    v_add_u32 v50, {sT0}, v50
    v_mul_u32_u24 v51, {US}, v53
    v_lshl_add_u32 v51, v52, 4, v51
    v_add_u32 v51, {U+480}, v51
    s_waitcnt lgkmcnt(0)
    s_barrier
    """)
    stamp(4)
    a(f"global_load_dwordx4 v[20:23], v50, {XNB} sc1")
    AF = 120
    def aload(m):
        a(f"ds_read_b64 v[{AF+4*m}:{AF+4*m+1}], v110 offset:{64*(32-m)}\nds_read_b64 v[{AF+4*m+2}:{AF+4*m+3}], v110 offset:{64*(32-m)+8}")
    for m in range(16): aload(m)
    a(f"s_cmp_eq_u32 {sQ}, 0\ns_cbranch_scc1 L_aq0")
    for m in range(16, 33): aload(m)
    a("s_branch L_adone\nL_aq0:")
    a(f"""
    s_mul_i32 {sT0}, {sCH}, {KCS}
    s_add_u32 {sT0}, {sT0}, {KC + 1024 + 4*(64-63-3)}
    v_lshlrev_b32 v52, 2, v3
    v_sub_u32 v52, v2, v52
    v_lshl_add_u32 v53, v52, 2, {sT0}
    """)
    for mu in range(4):
        a(f"ds_read2_b32 v[{184+4*mu}:{185+4*mu}], v53 offset0:{16*mu+3} offset1:{16*mu+2}")
        a(f"ds_read2_b32 v[{186+4*mu}:{187+4*mu}], v53 offset0:{16*mu+1} offset1:{16*mu}")
    a(f"""
    v_lshlrev_b32 v54, 3, v3
    v_sub_u32 v54, v2, v54
    v_mov_b32 v55, 0x3f80
    v_mov_b32 v56, 0x3f800000
    """)
    for dw in range(4):
        for (dst, lo, n) in ((200 + dw, -4, 9), (204 + dw, 5, 7)):
            a(f"""
            v_add_u32 v57, {12 - 2*dw - lo}, v54
            v_add_u32 v58, {12 - 2*dw - 1 - lo}, v54
            v_cmp_gt_u32 vcc, {n}, v57
            v_cmp_gt_u32 s[62:63], {n}, v58
            v_cndmask_b32 v57, 0, v55, vcc
            v_cndmask_b32 v58, 0, v56, s[62:63]
            v_or_b32 v{dst}, v57, v58
            """)
    a("s_waitcnt lgkmcnt(0)")
    for r in range(4):
        a(f"v_cmp_le_i32 vcc, {r}, v52\nv_cndmask_b32 v{184+r}, 0, v{184+r}, vcc")
    a(f"""
    L_adone:
    s_mov_b32 {sCNT}, 0
    s_mov_b32 {sT0}, {TAGM}
    L_poll1:
    s_waitcnt vmcnt(0)
    v_xor_b32 v24, s{sMSK}, v20
    v_bitop3_b32 v24, v24, v21, s{sMSK+1} bitop3:0xf6
    v_bitop3_b32 v24, v24, v22, s{sMSK+2} bitop3:0xf6
    v_bitop3_b32 v24, v24, v23, s{sMSK+3} bitop3:0xf6
    v_and_b32 v24, {sT0}, v24
    v_cmp_ne_u32 vcc, 0, v24
    s_add_u32 {sCNT}, {sCNT}, 1
    s_cbranch_vccz L_poll1_done
    s_cmp_ge_u32 {sCNT}, {SPIN}
    s_cbranch_scc1 L_poll1_done
    s_mov_b64 exec, vcc
    global_load_dwordx4 v[20:23], v50, {XNB} sc1
    s_branch L_poll1
    L_poll1_done:
    s_mov_b64 exec, -1
    """)
    for i in range(4): a(f"v_add_u32 v{20+i}, s{sDEC+i}, v{20+i}")
    a(f"""
    ds_write_b128 v51, v[20:23]
    s_waitcnt lgkmcnt(0)
    s_barrier
    """)
    stamp(5)
    NB = 6; BF = 60
    UP = "v[20:23]"; LO = "v[24:27]"
    def bload(mp): a(f"ds_read_b128 v[{BF+4*(mp%NB)}:{BF+4*(mp%NB)+3}], v111 offset:{64*(40-mp)}")
    for mp in range(NB - 1): bload(mp)
    a(f"""
    s_or_b32 {sT0}, s2, {sWV}
    s_cmp_lg_u32 {sT0}, 0
    s_cbranch_scc1 L_noE
    v_not_b32 v28, s36
    v_not_b32 v29, s37
    v_not_b32 v30, s38
    v_not_b32 v31, s39
    v_mov_b32 v32, {WS_E}
    s_mov_b64 exec, 1
    global_store_dwordx4 v32, v[28:31], {WS} sc1
    s_mov_b64 exec, -1
    L_noE:
    """)
    for mp in range(41):
        if mp == 16: a(f"s_cmp_eq_u32 {sQ}, 0\ns_cbranch_scc1 L_seg3")
        if mp == 32: a(f"s_cmp_eq_u32 {sQ}, 1\ns_cbranch_scc1 L_convdone")
        if mp + NB - 1 <= 40:
            bload(mp + NB - 1); a(f"s_waitcnt lgkmcnt({NB-1})")
        else: a(f"s_waitcnt lgkmcnt({40-mp})")
        b = f"v[{BF+4*(mp%NB)}:{BF+4*(mp%NB)+3}]"
        if mp <= 32: a(f"v_mfma_f32_16x16x32_bf16 {UP}, v[{AF+4*mp}:{AF+4*mp+3}], {b}, {'0' if mp==0 else UP}")
        if mp >= 8: a(f"v_mfma_f32_16x16x32_bf16 {LO}, v[{AF+4*(mp-8)}:{AF+4*(mp-8)+3}], {b}, {'0' if mp==8 else LO}")
    a("s_branch L_convdone\nL_seg3:")
    o3 = 2048 - 448 + 480 - 56
    a("s_waitcnt lgkmcnt(0)")
    for nu in range(4):
        a(f"ds_read_b64 v[{60+4*nu}:{61+4*nu}], v111 offset:{o3+512*nu}\nds_read_b64 v[{62+4*nu}:{63+4*nu}], v111 offset:{o3+512*nu+8}")
    for nu in range(4):
        a(f"s_waitcnt lgkmcnt({6-2*nu})")
        a(f"v_mfma_f32_16x16x32_bf16 v[{208+8*nu}:{211+8*nu}], v[{60+4*nu}:{63+4*nu}], v[200:203], 0")
        a(f"v_mfma_f32_16x16x32_bf16 v[{212+8*nu}:{215+8*nu}], v[{60+4*nu}:{63+4*nu}], v[204:207], 0")
    for nu in range(4):
        for r in range(4): a(f"v_cvt_pk_bf16_f32 v{76+4*nu+r}, v{208+8*nu+r}, v{212+8*nu+r}")
        for mu in range(4 - nu):
            c = nu + mu
            a(f"v_mfma_f32_16x16x32_bf16 v[{28+4*c}:{31+4*c}], v[{76+4*nu}:{79+4*nu}], v[{184+4*mu}:{187+4*mu}], {'0' if nu==0 else f'v[{28+4*c}:{31+4*c}]'}")
    def yaddr(dst):
        a(f"""
        v_lshlrev_b32 v52, 2, v3
        v_and_b32 v52, 8, v52
        v_or_b32 v52, {sCH}, v52
        v_xor_b32 v52, v2, v52
        v_lshlrev_b32 v52, 4, v52
        v_lshl_add_u32 v{dst}, v3, 8, v52
        """)
    yaddr(53)
    a(f"s_lshl_b32 {sT0}, {sCH}, 12\nv_add_u32 v53, {sT0}, v53")
    for c in range(4): a(f"ds_write_b128 v53, v[{28+4*c}:{31+4*c}] offset:{YP+1024*c}")
    a("L_convdone:")
    yaddr(53)
    a(f"""
    s_lshl_b32 {sT0}, {sCH}, 13
    s_lshl_b32 {sT1}, {sQ}, 11
    s_add_u32 {sT0}, {sT0}, {sT1}
    v_add_u32 v53, {sT0}, v53
    v_and_b32 v54, 1, v1
    v_lshrrev_b32 v55, 2, v1
    v_bfe_u32 v56, v1, 1, 1
    v_lshl_or_b32 v57, v56, 3, v54
    v_xor_b32 v55, v55, v57
    v_lshlrev_b32 v55, 4, v55
    v_lshl_add_u32 v55, v56, 9, v55
    s_lshl_b32 {sT0}, {sWV}, 10
    v_add_u32 v55, {sT0}, v55
    v_lshl_add_u32 v56, v54, 12, v55
    v_lshl_add_u32 v55, v54, 13, v55
    s_nop 1
    ds_write_b128 v53, {UP} offset:{YL+1024}
    ds_write_b128 v53, {LO} offset:{YL}
    s_waitcnt lgkmcnt(0)
    s_barrier
    """)
    stamp(6)
    a(f"""
    ds_read_b128 v[20:23], v55 offset:{YL}
    ds_read_b128 v[24:27], v55 offset:{YL+256}
    s_cmp_lt_u32 {sWV}, 4
    s_cbranch_scc1 L_nopart
    ds_read_b128 v[28:31], v56 offset:{YP-4096}
    ds_read_b128 v[32:35], v56 offset:{YP-4096+256}
    s_waitcnt lgkmcnt(0)
    """)
    for i in range(8): a(f"v_add_f32 v{20+i}, v{20+i}, v{28+i}")
    a("L_nopart:\ns_waitcnt lgkmcnt(0)")
    for i in range(4): a(f"v_cvt_pk_bf16_f32 v{28+i}, v{20+2*i}, v{21+2*i}")
    a(f"global_store_dwordx4 v7, v[28:31], {YB} sc1")
    stamp(7)
    role[0] = 'all'
    a(f"""
    L_epi:
    s_cmp_eq_u32 {sWV}, 7
    s_cbranch_scc1 L_fin
    v_lshlrev_b32 v50, 1, v0
    global_load_ushort v40, v50, {DSK}
    ds_read_b64_tr_b16 v[60:61], v19
    ds_read_b64_tr_b16 v[62:63], v19 offset:3840
    ds_read_b64_tr_b16 v[64:65], v19 offset:7680
    ds_read_b64_tr_b16 v[66:67], v19 offset:{7680+3840}
    v_lshrrev_b32 v52, 1, v0
    v_and_b32 v53, 1, v0
    v_lshlrev_b32 v52, 13, v52
    v_lshl_add_u32 v52, v53, 4, v52
    s_lshl_b32 {sT0}, {sTB}, 5
    v_add_u32 v52, {sT0}, v52
    v_mov_b32 v53, {Y_IDX}
    s_mul_i32 {sT0}, {sTB}, 7168
    s_add_u32 {sT0}, {sT0}, 3584
    v_add_u32 v50, {sT0}, v50
    s_mov_b32 {sT1}, {BIAS}
    s_waitcnt lgkmcnt(0)
    """)
    for i in range(4):
        a(f"v_add_u32 v{64+i}, {sT1}, v{64+i}\nv_lshlrev_b32 v{70+2*i}, 16, v{60+i}\nv_and_b32 v{71+2*i}, {sHI}, v{60+i}")
    for i in range(4): a(f"v_lshlrev_b32 v{80+2*i}, 16, v{64+i}\nv_and_b32 v{81+2*i}, {sHI}, v{64+i}")
    a("s_waitcnt vmcnt(0)\nv_lshlrev_b32 v40, 16, v40")
    a(f"global_load_dwordx4 v[20:23], v52, {YB} sc1\nglobal_load_dword v24, v53, {YB} sc1")
    for i in range(8): a(f"v_mul_f32 v{90+i}, v40, v{80+i}")
    for i in range(4): a(f"v_cvt_pk_bf16_f32 v{60+i}, v{90+2*i}, v{91+2*i}")
    for i in range(4): a(f"v_lshlrev_b32 v{90+2*i}, 16, v{60+i}\nv_and_b32 v{91+2*i}, {sHI}, v{60+i}")
    a(f"""
    s_mov_b32 {sCNT}, 0
    L_poll2:
    s_waitcnt vmcnt(0)
    v_max3_u32 v25, v20, v21, v22
    v_max3_u32 v25, v25, v23, v24
    v_cmp_eq_u32 vcc, -1, v25
    s_add_u32 {sCNT}, {sCNT}, 1
    s_cbranch_vccz L_poll2_done
    s_cmp_ge_u32 {sCNT}, {SPIN}
    s_cbranch_scc1 L_poll2_done
    s_mov_b64 exec, vcc
    global_load_dwordx4 v[20:23], v52, {YB} sc1
    global_load_dword v24, v53, {YB} sc1
    s_branch L_poll2
    L_poll2_done:
    s_mov_b64 exec, -1
    """)
    stamp(8)
    a(f"v_readfirstlane_b32 {sIDX}, v24")
    for i in range(4): a(f"v_lshlrev_b32 v{28+2*i}, 16, v{20+i}\nv_and_b32 v{29+2*i}, {sHI}, v{20+i}")
    for base in (90, 70):
        for i in range(8): a(f"v_add_f32 v{28+i}, v{28+i}, v{base+i}")
        for i in range(4): a(f"v_cvt_pk_bf16_f32 v{20+i}, v{28+2*i}, v{29+2*i}")
        for i in range(4): a(f"v_lshlrev_b32 v{28+2*i}, 16, v{20+i}\nv_and_b32 v{29+2*i}, {sHI}, v{20+i}")
    for i in range(8): a(f"v_add_f32 v{28+i}, v{28+i}, v{80+i}")
    for i in range(4): a(f"v_cvt_pk_bf16_f32 v{20+i}, v{28+2*i}, v{29+2*i}")
    a(f"s_lshl_b32 {sT0}, {sTB}, 3\ns_sub_u32 {sT0}, {sIDX}, {sT0}")
    for r in range(8):
        a(f"s_cmp_eq_u32 {sT0}, {r}\ns_cbranch_scc1 L_sk{r}")
        a(f"global_store_short{'_d16_hi' if r & 1 else ''} v50, v{20+r//2}, {OUT} offset:{896*(r-4)} {opt.get('ostf','')}")
        a(f"L_sk{r}:")
    a("s_branch L_fin")
    role[0] = 'ffn'
    def perms(src, dst):
        for kp in range(4):
            for dw in range(4):
                a(f"v_perm_b32 v{dst+4*(2*dw)+kp}, v{src+4*(2*kp+1)+dw}, v{src+4*(2*kp)+dw}, {sT2}")
                a(f"v_perm_b32 v{dst+4*(2*dw+1)+kp}, v{src+4*(2*kp+1)+dw}, v{src+4*(2*kp)+dw}, {sT3}")
    def gemv(afrag, w, acc, res):
        for e in range(8): a(f"v_mfma_f32_16x16x32_bf16 v[{acc+4*e}:{acc+4*e+3}], v[{afrag}:{afrag+3}], v[{w+4*e}:{w+4*e+3}], 0")
    def fold(acc, res):
        for e in range(4): a(f"v_add_f32_dpp v{res+e}, v{acc+4*e+1}, v{acc+4*e} row_shl:8 row_mask:0xf bank_mask:0x3")
        for e in range(4, 8): a(f"v_add_f32_dpp v{res+e-4}, v{acc+4*e}, v{acc+4*e+1} row_shr:8 row_mask:0xf bank_mask:0xc")
    a(f"""
    L_ffn:
    s_cmp_eq_u32 {sWV}, 7
    s_cbranch_scc1 L_ffn7
    s_cmp_ge_u32 {sFI}, 28
    s_cbranch_scc1 L_spare
    v_lshrrev_b32 v50, 3, v2
    v_lshl_add_u32 v50, v50, 2, v3
    v_and_b32 v51, 7, v2
    v_lshlrev_b32 v51, 4, v51
    s_movk_i32 {sT0}, {8*3584}
    v_mad_u32_u24 v52, v50, {sT0}, v51
    s_mul_i32 {sT0}, {sWV}, {64*3584}
    s_lshl_b32 {sT1}, {sFI}, 7
    s_add_u32 {sT0}, {sT0}, {sT1}
    s_add_u32 {sT0}, {sT0}, 3584
    v_add_u32 v52, {sT0}, v52
    v_add_u32 v53, {3*3584}, v52
    v_add_u32 v54, {6*3584}, v52
    s_movk_i32 {sT0}, {8*896}
    v_mad_u32_u24 v55, v50, {sT0}, v51
    s_mul_i32 {sT0}, {sFI}, {64*896}
    s_lshl_b32 {sT1}, {sWV}, 7
    s_add_u32 {sT0}, {sT0}, {sT1}
    s_add_u32 {sT0}, {sT0}, 3584
    v_add_u32 v55, {sT0}, v55
    """)
    for (base, ptr) in ((60, WG_), (92, WU)):
        for e in range(8): a(f"global_load_dwordx4 v[{base+4*e}:{base+4*e+3}], v{52+e//3}, {ptr} offset:{3584*(e%3-1)}")
    for e in range(8): a(f"global_load_dwordx4 v[{124+4*e}:{127+4*e}], v55, {WD} offset:{896*(e-4)}")
    a(f"""
    s_mov_b32 {sT2}, 0x05040100
    s_mov_b32 {sT3}, 0x07060302
    v_and_b32 v50, 1, v2
    v_lshlrev_b32 v50, 6, v50
    v_lshl_add_u32 v50, v3, 4, v50
    s_lshl_b32 {sT0}, {sWV}, 7
    v_add_u32 v50, {sT0}, v50
    v_lshrrev_b32 v56, 3, v2
    v_lshlrev_b32 v56, 4, v56
    v_lshl_add_u32 v56, v51, 1, v56
    s_lshl_b32 {sT1}, {sWV}, 9
    v_add_u32 v56, {sT1}, v56
    v_lshlrev_b32 v57, 2, v1
    v_lshl_add_u32 v58, v1, 1, {sT0}
    s_lshl_b32 {sT0}, s2, 13
    s_lshl_b32 {sT1}, {sWV}, 8
    s_add_u32 {sT0}, {sT0}, {sT1}
    v_add_u32 v59, {sT0}, v4
    s_waitcnt vmcnt(16)
    """)
    perms(60, 156); a("s_waitcnt vmcnt(8)"); perms(92, 188); a("s_waitcnt vmcnt(0)"); perms(124, 220)
    stamp(3)
    a(f"""
    s_barrier
    ds_read_b128 v[20:23], v50 offset:{FXN}
    s_waitcnt lgkmcnt(0)
    """)
    stamp(5)
    gemv(20, 156, 60, 0); gemv(20, 188, 92, 0)
    fold(60, 24); fold(92, 28)
    a(f"""
    s_mov_b64 exec, 0xffff
    ds_write_b128 v56, v[24:27] offset:{FGP}
    ds_write_b128 v56, v[28:31] offset:{FGP+256}
    s_mov_b64 exec, -1
    s_waitcnt lgkmcnt(0)
    s_barrier
    """)
    for p in range(7): a(f"ds_read2st64_b32 v[{24+2*p}:{25+2*p}], v57 offset0:{FGP//256+2*p} offset1:{FGP//256+2*p+1}")
    a(f"""
    s_waitcnt lgkmcnt(0)
    v_add_f32 v24, v24, v26
    v_add_f32 v25, v25, v27
    v_add_f32 v28, v28, v30
    v_add_f32 v29, v29, v31
    v_add_f32 v32, v32, v34
    v_add_f32 v33, v33, v35
    v_add_f32 v24, v24, v28
    v_add_f32 v25, v25, v29
    v_add_f32 v32, v32, v36
    v_add_f32 v33, v33, v37
    v_add_f32 v24, v24, v32
    v_add_f32 v25, v25, v33
    v_cvt_pk_bf16_f32 v24, v24, v25
    v_lshlrev_b32 v26, 16, v24
    v_and_b32 v25, {sHI}, v24
    v_mul_f32 v27, {hex(f2u(-1.4426950408889634))}, v26
    v_exp_f32 v27, v27
    v_add_f32 v27, 1.0, v27
    v_rcp_f32 v27, v27
    v_mul_f32 v26, v26, v27
    v_cvt_pk_bf16_f32 v26, 0, v26
    v_mul_f32 v26, v26, v25
    v_cvt_pk_bf16_f32 v26, v26, v26
    ds_write_b16 v58, v26 offset:{FH}
    ds_read_b128 v[20:23], v50 offset:{FH}
    s_waitcnt lgkmcnt(0)
    """)
    gemv(20, 220, 60, 0); fold(60, 24)
    a(f"""
    s_mov_b64 exec, 0xffff
    global_store_dwordx4 v59, v[24:27], {YB} sc1
    s_mov_b64 exec, -1
    """)
    stamp(7)
    a(f"""
    s_branch L_epi
    L_spare:""")
    role[0] = 'ffn7'
    a(f"""
    s_barrier
    s_branch L_epi
    L_ffn7:
    v_add_u32 v50, {WS_CAND}, v4
    s_not_b32 {sT3}, s39
    s_mov_b32 {sCNT}, 0
    s_waitcnt vmcnt(0)
    L_poll3:
    """)
    for i in range(4): a(f"global_load_dwordx4 v[{20+4*i}:{23+4*i}], v50, {WS} offset:{1024*i} sc1")
    a(f"""
    s_waitcnt vmcnt(0)
    v_xor_b32 v51, {sT3}, v23
    v_bitop3_b32 v51, v51, v27, {sT3} bitop3:0xf6
    v_bitop3_b32 v51, v51, v31, {sT3} bitop3:0xf6
    v_bitop3_b32 v51, v51, v35, {sT3} bitop3:0xf6
    v_cmp_ne_u32 vcc, 0, v51
    s_add_u32 {sCNT}, {sCNT}, 1
    s_cmp_ge_u32 {sCNT}, {SPIN}
    s_cbranch_scc1 L_poll3_done
    s_mov_b64 exec, vcc
    s_cbranch_execnz L_poll3
    L_poll3_done:
    s_mov_b64 exec, -1
    """)
    stamp(3)
    a(f"""
    s_cmp_ge_u32 {sFI}, 28
    s_cbranch_scc1 L_spare7
    v_max3_f32 v51, v20, v24, v28
    v_max_f32 v51, v51, v32
    v_cmp_eq_u32 vcc, v51, v24
    v_max_f32_dpp v52, v51, v51 row_ror:8 row_mask:0xf bank_mask:0xf
    v_cmp_eq_u32 s[62:63], v51, v28
    v_cndmask_b32 v21, v21, v25, vcc
    v_max_f32_dpp v52, v52, v52 row_ror:4 row_mask:0xf bank_mask:0xf
    v_cndmask_b32 v22, v22, v26, vcc
    v_cmp_eq_u32 vcc, v51, v32
    v_max_f32_dpp v52, v52, v52 row_ror:2 row_mask:0xf bank_mask:0xf
    v_cndmask_b32 v21, v21, v29, s[62:63]
    v_cndmask_b32 v22, v22, v30, s[62:63]
    v_max_f32_dpp v52, v52, v52 row_ror:1 row_mask:0xf bank_mask:0xf
    v_cndmask_b32 v21, v21, v33, vcc
    v_cndmask_b32 v22, v22, v34, vcc
    v_max_f32_dpp v52, v52, v52 row_bcast:15 row_mask:0xa bank_mask:0xf
    v_max_f32_dpp v52, v52, v52 row_bcast:31 row_mask:0xc bank_mask:0xf
    v_readlane_b32 {sP}, v52, 63
    s_and_b32 {sIDX}, {sP}, 0x7ff
    s_mul_i32 {sT0}, {sIDX}, 896
    v_add_u32 v53, {sT0}, v4
    s_mov_b32 exec_hi, 0x00ffffff
    global_load_dwordx4 v[10:13], v53, {X}
    s_mov_b32 exec_hi, -1
    v_cmp_eq_u32 vcc, {sP}, v51
    s_ff1_i32_b64 {sT1}, vcc
    s_and_b32 {sT1}, {sT1}, 63
    v_readlane_b32 {sT2}, v21, {sT1}
    v_readlane_b32 {sT3}, v22, {sT1}
    s_cmp_lg_u32 {sFI}, 0
    s_cbranch_scc1 L_noidx
    v_mov_b32 v54, {Y_IDX}
    v_mov_b32 v55, {sIDX}
    s_mov_b64 exec, 1
    global_store_dword v54, v55, {YB} sc1
    s_mov_b64 exec, -1
    s_waitcnt vmcnt(1)
    s_branch L_idx2
    L_noidx:
    s_waitcnt vmcnt(0)
    L_idx2:
    """)
    stamp(4)
    for i in range(4): a(f"v_lshlrev_b32 v{20+2*i}, 16, v{10+i}\nv_and_b32 v{21+2*i}, {sHI}, v{10+i}")
    for i in range(8): a(f"v_subrev_f32 v{20+i}, {sT2}, v{20+i}")
    for i in range(4): a(f"v_cvt_pk_bf16_f32 v{28+i}, v{20+2*i}, v{21+2*i}")
    for i in range(4): a(f"v_lshlrev_b32 v{20+2*i}, 16, v{28+i}\nv_and_b32 v{21+2*i}, {sHI}, v{28+i}")
    for i in range(8): a(f"v_mul_f32 v{20+i}, {sT3}, v{20+i}")
    for i in range(4): a(f"v_cvt_pk_bf16_f32 v{28+i}, v{20+2*i}, v{21+2*i}")
    a(f"""
    ds_write_b128 v4, v[28:31] offset:{FXN}
    ds_write_b128 v4, v[10:13] offset:{FXR}
    s_waitcnt lgkmcnt(0)
    s_barrier
    s_and_b32 {sT1}, {sFI}, 3
    s_lshl_b32 {sT1}, {sT1}, 2
    v_lshrrev_b32 v50, 2, v2
    v_add_u32 v50, {sT1}, v50
    v_and_b32 v51, 7, v50
    v_lshrrev_b32 v50, 3, v50
    v_lshlrev_b32 v51, 3, v51
    v_lshl_add_u32 v50, v50, 2, v51
    v_and_b32 v51, 3, v2
    s_lshr_b32 {sT1}, {sFI}, 2
    s_lshl_b32 {sT1}, {sT1}, 6
    v_add3_u32 v50, v50, v51, {sT1}
    v_lshlrev_b32 v51, 1, v50
    global_load_ushort v40, v51, {DSK}
    ds_read_u16 v41, v51 offset:{FXN}
    ds_read_u16 v42, v51 offset:{FXR}
    v_add_u32 v53, {sT0}, v51
    v_lshrrev_b32 v52, 1, v50
    v_and_b32 v50, 1, v50
    v_lshlrev_b32 v52, 13, v52
    v_lshl_add_u32 v52, v50, 4, v52
    s_lshr_b32 {sT1}, {sIDX}, 3
    s_lshl_b32 {sT1}, {sT1}, 5
    s_and_b32 {sT2}, {sIDX}, 6
    s_lshl_b32 {sT2}, {sT2}, 1
    s_add_u32 {sT1}, {sT1}, {sT2}
    v_add_u32 v52, {sT1}, v52
    v_lshlrev_b32 v54, 13, v3
    v_lshl_add_u32 v54, v2, 2, v54
    s_lshl_b32 {sT1}, {sFI}, 6
    s_add_u32 {sT1}, {sT1}, {Y_PART}
    v_add_u32 v54, {sT1}, v54
    """)
    for p in range(1, 7): a(f"v_add_u32 v{54+p}, {32768*p}, v54")
    a(f"""
    s_and_b32 {sT1}, {sP}, {sHI}
    v_mov_b32 v43, {sT1}
    v_mul_f32 v43, {hex(f2u(-1.4426950408889634))}, v43
    v_exp_f32 v43, v43
    v_add_f32 v43, 1.0, v43
    v_rcp_f32 v43, v43
    v_cvt_pk_bf16_f32 v43, 0, v43
    s_waitcnt vmcnt(0) lgkmcnt(0)
    v_lshlrev_b32 v40, 16, v40
    v_lshlrev_b32 v41, 16, v41
    v_lshlrev_b32 v42, 16, v42
    v_mul_f32 v40, v40, v41
    v_cvt_pk_bf16_f32 v40, 0, v40
    s_barrier
    s_mov_b32 {sCNT}, 0
    L_poll4:
    """)
    for p in range(7): a(f"global_load_dword v{20+p}, v{54+p}, {YB} sc1")
    a(f"""
    global_load_dword v27, v52, {YB} sc1
    s_waitcnt vmcnt(0)
    v_max3_u32 v28, v20, v21, v22
    v_max3_u32 v29, v23, v24, v25
    v_max3_u32 v28, v28, v26, v27
    v_max_u32 v28, v28, v29
    v_cmp_eq_u32 vcc, -1, v28
    s_add_u32 {sCNT}, {sCNT}, 1
    s_cmp_ge_u32 {sCNT}, {SPIN}
    s_cbranch_scc1 L_poll4_done
    s_mov_b64 exec, vcc
    s_cbranch_execnz L_poll4
    L_poll4_done:
    s_mov_b64 exec, -1
    """)
    stamp(8)
    a(f"""
    v_add_f32 v20, v20, v21
    v_add_f32 v22, v22, v23
    v_add_f32 v24, v24, v25
    v_add_f32 v20, v20, v26
    v_add_f32 v22, v22, v24
    s_bitcmp1_b32 {sIDX}, 0
    s_cselect_b32 {sT1}, 0, 16
    v_add_f32 v20, v20, v22
    v_lshlrev_b32 v27, {sT1}, v27
    v_mov_b32 v21, v20
    v_and_b32 v27, {sHI}, v27
    v_permlane32_swap_b32 v20, v21
    v_add_f32 v20, v20, v21
    v_add_f32 v27, v27, v40
    v_mov_b32 v21, v20
    v_cvt_pk_bf16_f32 v27, 0, v27
    v_permlane16_swap_b32 v20, v21
    v_add_f32 v20, v20, v21
    v_add_f32 v27, v27, v42
    v_cvt_pk_bf16_f32 v20, 0, v20
    v_cvt_pk_bf16_f32 v27, 0, v27
    v_mul_f32 v20, v20, v43
    v_cvt_pk_bf16_f32 v20, 0, v20
    v_add_f32 v20, v20, v41
    v_cvt_pk_bf16_f32 v20, 0, v20
    v_add_f32 v20, v20, v27
    v_cvt_pk_bf16_f32 v20, v20, v20
    s_mov_b64 exec, 0xffff
    global_store_short v53, v20, {OUT}
    s_mov_b64 exec, -1
    s_branch L_fin
    L_spare7:
    s_barrier
    L_fin:
    """)
    if diag:
        a("s_waitcnt vmcnt(0)")
        stamp(9)
        a(f"""
        s_lshl_b32 {sT0}, s2, 3
        s_add_u32 {sT0}, {sT0}, {sWV}
        s_lshl_b32 {sT0}, {sT0}, 6
        s_add_u32 {sT0}, {sT0}, {WS_STAMP}
        v_mov_b32 v50, {sT0}
        """)
        for i in range(10): a(f"v_mov_b32 v{20+i}, s{64+2*i}")
        a(f"v_mov_b32 v30, {sCNT}\nv_mov_b32 v31, 0\ns_mov_b64 exec, 1")
        for i in range(3): a(f"global_store_dwordx4 v50, v[{20+4*i}:{23+4*i}], {WS} offset:{16*i}")
        if opt.get("dbg"):
            a(f"""
            s_load_dwordx2 s[62:63], s[0:1], 104
            s_mov_b64 exec, -1
            v_mov_b32 v40, 0
            s_not_b32 {sT0}, s64
            v_writelane_b32 v40, {sT0}, 0
            s_cmp_ge_u32 s2, 224
            s_cbranch_scc1 L_dbg_ffn
            """)
            for i in range(10): a(f"v_writelane_b32 v40, s{64+2*i}, {1+i}")
            a(f"s_cmp_eq_u32 {sWV}, 0\ns_branch L_dbg2\nL_dbg_ffn:")
            for n, i in enumerate((3, 4, 8, 9)): a(f"v_writelane_b32 v40, s{64+2*i}, {11+n}")
            a(f"s_cmp_ge_u32 s2, 252\ns_cbranch_scc1 L_end\ns_cmp_eq_u32 {sWV}, 7\nL_dbg2:\ns_cbranch_scc0 L_end")
            a(f"v_lshlrev_b32 v41, 2, v1\ns_waitcnt lgkmcnt(0)\ns_mov_b64 exec, 0xffff\nglobal_atomic_umax v41, v40, s[62:63]")
    if opt.get("hold"):
        a(f"""
        L_hold:
        s_memrealtime s[66:67]
        s_waitcnt lgkmcnt(0)
        s_sub_u32 s66, s66, s64
        s_cmp_lt_u32 s66, {opt['hold']}
        s_cbranch_scc1 L_hold
        """)
    a("L_end:\ns_endpgm\nL_code_end:")
    rep = []
    body = hz.fix(a.text(), rep)
    if opt.get("verbose"):
        for r in rep: print("nop", r)
    if opt.get("list"):
        main = dict(name=KNAME, body=body, grid=256, block=512, lds=LDS_BYTES, vgpr=256, sgpr=96)
        emp = dict(name="empty_kernel", body="    s_endpgm\n", grid=opt.get("egrid", 1), block=64, lds=0, vgpr=8, sgpr=16)
        return list_file([dict(m=main, e=emp)[ch] for ch in opt["list"]])
    return single_file(body, 256, 512, LDS_BYTES, 256, sgpr=96)

if __name__ == "__main__":
    open("k_diag.s", "w").write(gen({"diag": True}))
    open("k.s", "w").write(gen({"verbose": "-v" in sys.argv}))
    open("h_start.s", "w").write(gen({"hold": 2000}))
    for nm, h in dict(rows=("all",1), pub=("all",2), kgen=("conv",3), tbl=("conv",4), hop1=("conv",5), conv=("conv",6), hop2=("all",8),
                      wts=("ffn",3), cand=("ffn7",3), xrow=("ffn7",4), part=("ffn",7), parts=("ffn7",8)).items():
        open(f"h_{nm}.s", "w").write(gen({"hold": 2000, "holdat": h}))
    open("x_sc1.s", "w").write(gen({"hold": 2000, "ostf": "sc1"}))
    open("x_nt.s", "w").write(gen({"hold": 2000, "ostf": "nt"}))
    open("x_me.s", "w").write(gen({"hold": 2000, "list": "me", "egrid": 256}))
    open("x_em.s", "w").write(gen({"hold": 2000, "list": "em", "egrid": 256}))
    open("x_em0.s", "w").write(gen({"list": "em", "egrid": 256}))
```

```python
import sys, struct
from asmlib import *
import hz, align

def f2u(x): return struct.unpack("<I", struct.pack("<f", x))[0]
def fx(x): return hex(f2u(x))

WS_E    = 0x0
WS_CAND = 0x1000
WS_XN   = 0x100000
WS_Y    = 0x300000
Y_PART  = 224 * 8192
Y_IDX   = Y_PART + 4096
WS_STAMP= 0x800000
RS    = 1040
CHS   = 53 * RS
LNX   = 110336
LNN   = LNX + 7680
CANDL = LNN + 7680
KC    = CANDL + 128 + 16
KCS   = 1376
ZT    = 1092
TT    = 129152
TCS   = 2240
TTS   = 4 * TCS
U     = TT + 2 * TTS
US    = 4672
LDS_BYTES = U + 2 * US
YL    = 0
YP    = 8192
FXN = 0; FXR = 1024; FGP = 2048; FH = 8192
TAGM = 0x60006000
BIAS = (68 << 7) * 0x10001
SPIN = 200000
LOG2E = 1.4426950408889634

def box_table():
    out = []
    for l in range(64):
        i, g = l & 15, l >> 4
        for (lo, hi) in ((-4, 4), (5, 11)):
            for dw in range(4):
                v = 0
                for hf in range(2):
                    e = i + 12 - (8 * g + 2 * dw + hf)
                    if lo <= e <= hi: v |= 0x3f80 << (16 * hf)
                out.append(v)
    return out

def bf16_round_int(l):
    u = f2u(float(l)); u = (u + 0x7fff + ((u >> 16) & 1)) >> 16
    return int(struct.unpack("<f", struct.pack("<I", u << 16))[0])
def ci_of(l):
    if l < 256: return l
    p = bf16_round_int(l); sh = p.bit_length() - 8
    return 128 * sh + (p >> sh)
JUNK = CANDL + 128
def addr_table():
    pads = []
    for ch in range(2):
        pads += [U + ch * US + 8 * i for i in range(60)]
        for c in range(4):
            pads += [TT + ch * TTS + c * TCS + 8 * i for i in range(4)] + [TT + ch * TTS + c * TCS + 2112 + 8 * i for i in range(4)]
        pads += [KC + ch * KCS - 8] + [KC + ch * KCS + ZT - 60 + 8 * i for i in range(8)] + [KC + ch * KCS + ZT + 252]
    assert len(pads) <= 256 and all(p % 8 == 0 for p in pads)
    T = [[0] * 4 * 512 for _ in range(5)]
    for tid in range(512):
        wv, l = tid >> 6, tid & 63
        ch = (wv >> 1) & 1; q = (wv & 1) + 2 * (wv >> 2)
        i, g = l & 15, l >> 4; jp, h = l & 31, l >> 5
        kc = KC + ch * KCS; tt = TT + ch * TTS; st = ch * CHS + q * 256
        slot = lambda s_, ln: ch * CHS + (4 * s_ + (ln >> 4)) * RS + (ln & 15) * 16
        s_, ln = (0, l) if q == 3 else (1, l)
        if q == 2 and l == 63: s_ = 0
        if q == 0 and h == 0: s_ = 2
        if q == 1 and l == 0: s_, ln = 2, 32
        j2, h2 = ln & 31, ln >> 5
        if s_ == 0: w = [kc + 2 * (8 * j2 + 4 * h2 + r) for r in range(4)]
        elif s_ == 1 and h2 == 0: w = [kc + 2 * (256 + 4 * j2 + r) for r in range(4)]
        elif s_ == 1: w = [kc + 2 * (384 + 2 * j2 + (r & 1) + 64 * (r >> 1)) for r in range(4)]
        elif h2 == 0:
            w = [kc + ZT + 2 * (32 * r + j2) for r in range(4)]
            if j2 < 2: w[0] = kc + 2 * (512 + j2)
        else: w = [kc + ZT + 2 * 128, JUNK, JUNK, JUNK]
        lh = 1023 - 256 * q - 4 * l
        e = [kc + 2 * ci_of(lh - k) for k in range(7)]
        vals = [st + jp * RS + 16 * h, st + g * RS + 16 * i, slot(s_, ln), U + (tid & 1) * US + 480 + 16 * (tid >> 1)] + w + e + [tt + 64 + 512 * q + 8 * l]
        if wv < 4:
            c = (15 - i) & 3; b = g >> 1
            vals += [tt + c * TCS + 2 * (15 - i - c + 8 * g), U + ch * US + 32 * i + 16 * g, kc + ZT - 8 + 4 * (i - 4 * g),
                     YL + ch * 4096 + 16 * ((i ^ (ch | b << 3)) + 16 * b) + 8 * (g & 1)]
        else:
            t = tid - 256; c2, b, j = l & 1, (l >> 1) & 1, l >> 2
            vals += [0, 0, pads[t] if t < len(pads) else JUNK, YL + c2 * 4096 + 512 * (wv - 4) + 16 * ((j ^ (c2 | b << 3)) + 16 * b)]
        for k, v in enumerate(vals): T[k >> 2][4 * tid + (k & 3)] = v
    return [v for t in T for v in t]
def extra_table():
    out = []
    for l in range(64):
        c, eps = l >> 4, l & 15; x = eps + c
        ci = -1 if x < 4 else 513 if x < 11 else 512 if x < 18 else 511
        out += [KC + 2 * ci, TT + c * TCS + 32 + 2 * eps]
    return out

def gen(opt):
    diag = opt.get("diag", False)
    a = Asm()
    role = ["all"]
    cnames = opt.setdefault("cnames", [])
    def cst(name):
        if opt.get("cyc"):
            if name not in cnames: cnames.append(name)
            i = cnames.index(name); assert i < 28
            a(f"s_memtime s[66:67]\ns_waitcnt lgkmcnt(0)\ns_mov_b32 s{68+i}, s66")
    def stamp(i):
        if diag: a(f"s_memrealtime s[{64+2*i}:{65+2*i}]\ns_waitcnt lgkmcnt(0)")
        elif opt.get("cyc"): cst(f"{role[0]}{i}")
        elif opt.get("holdat") == (role[0], i): a(f"s_memrealtime s[64:65]\ns_waitcnt lgkmcnt(0)")
    def inter(*ls):
        for i in range(max(len(x) for x in ls)):
            for x in ls:
                if i < len(x): a(x[i])
    sWV="s3"; sTB="s6"; sPR="s7"; sCH="s40"; sQ="s41"; sP="s42"; sPP="s[42:43]"; sT0="s44"; sT1="s45"; sT2="s46"; sT3="s47"
    sLD="s48"; sIDX="s49"; sCNT="s50"; sFI="s51"; sDEC=52; sMSK=56; sHI="s96"; sONE="s97"; sKC="s98"; sTT="s99"
    X="s[8:9]"; LOGA="s[10:11]"; AIM="s[12:13]"; CRE="s[14:15]"; CIM="s[16:17]"; LDT="s[18:19]"; DSK="s[20:21]"
    WR="s[24:25]"; WG_="s[26:27]"; WU="s[28:29]"; WD="s[30:31]"; OUT="s[32:33]"; WS="s[34:35]"
    YB="s[22:23]"; XNB="s[60:61]"
    pf = opt.get("pf", "late")
    def wprefetch(tag):
        a(f"""
        s_lshr_b32 {sT0}, s2, 3
        s_mul_hi_u32 {sT1}, {sT0}, 0x24924925
        s_mul_i32 {sT2}, {sT1}, 7
        s_sub_u32 {sT0}, {sT0}, {sT2}
        s_lshl_b32 {sT1}, {sT1}, 3
        s_and_b32 {sT2}, s2, 7
        s_add_u32 {sT1}, {sT1}, {sT2}
        s_min_u32 {sT1}, {sT1}, 27
        s_lshl_b32 {sT0}, {sT0}, 6
        v_add_u32 v51, {sT0}, v1
        s_cmp_eq_u32 {sWV}, 0
        s_cselect_b64 s[100:101], {WG_}, {WU}
        s_cmp_lt_u32 {sWV}, 2
        s_cselect_b64 s[100:101], s[100:101], {WD}
        s_movk_i32 {sT0}, 128
        s_cselect_b32 {sT2}, 3584, {sT0}
        s_cselect_b32 {sT0}, {sT0}, 57344
        s_mul_i32 {sT0}, {sT0}, {sT1}
        v_mul_u32_u24 v51, {sT2}, v51
        v_add_u32 v91, {sT0}, v51
        v_lshlrev_b32 v51, 5, v1
        v_add_u32 v97, box_tab-L_pc, v51
        v_lshlrev_b32 v51, 3, v1
        v_add_u32 v84, xtra_tab-L_pc, v51
        """)
    if diag or opt.get("hold"): a("s_memrealtime s[64:65]")
    if opt.get("cyc"):
        for i in range(28): a(f"s_mov_b32 s{68+i}, 0")
        cst("start")
    a(f"""
    s_cmp_ge_u32 s2, 256
    s_cbranch_scc1 L_end
    s_load_dwordx16 s[8:23], s[0:1], 0
    s_load_dwordx8 s[24:31], s[0:1], 64
    s_load_dwordx2 {OUT}, s[0:1], 96
    s_load_dwordx2 {WS}, s[0:1], 112
    s_getpc_b64 s[4:5]
    L_pc:
    v_lshrrev_b32 v2, 6, v0
    v_lshrrev_b32 v3, 2, v0
    v_readfirstlane_b32 {sWV}, v2
    s_bfe_u32 {sT0}, s2, 0x20003
    s_lshl_b32 {sT0}, {sT0}, 14
    v_lshl_add_u32 v3, v3, 7, {sT0}
    v_min_u32 v3, L_code_end-L_pc-4, v3
    global_load_dword v9, v3, s[4:5]
    v_and_b32 v1, 63, v0
    s_and_b32 {sT0}, s2, 7
    s_lshr_b32 {sT1}, s2, 3
    s_lshl_b32 {sTB}, {sT0}, 5
    s_add_u32 {sTB}, {sTB}, {sT1}
    s_mul_i32 {sPR}, {sT0}, 28
    s_add_u32 {sPR}, {sPR}, {sT1}
    s_lshl_b32 {sT2}, {sTB}, 3
    s_add_u32 {sT2}, {sT2}, {sWV}
    s_mul_i32 {sT3}, {sT2}, 896
    v_lshlrev_b32 v4, 4, v1
    v_add_u32 v5, {sT3}, v4
    s_bfe_u32 {sCH}, {sWV}, 0x10001
    s_lshr_b32 {sQ}, {sWV}, 2
    s_lshl_b32 {sQ}, {sQ}, 1
    s_and_b32 {sT0}, {sWV}, 1
    s_or_b32 {sQ}, {sQ}, {sT0}
    s_sub_u32 {sFI}, s2, 224
    v_mov_b32 v36, -1
    v_mov_b32 v37, -1
    v_mov_b32 v38, -1
    v_mov_b32 v39, -1
    v_lshlrev_b32 v6, 4, v0
    s_cmp_ge_u32 s2, 224
    s_cselect_b32 {sT0}, s2, {sPR}
    s_cselect_b32 {sPR}, 0, {sPR}
    s_lshl_b32 {sT0}, {sT0}, 13
    v_add_u32 v7, {sT0}, v6
    s_lshl_b32 {sT0}, {sPR}, 1
    s_add_u32 {sT0}, {sT0}, {sCH}
    s_lshl_b32 {sT0}, {sT0}, 9
    s_lshl_b32 {sT1}, {sQ}, 7
    s_add_u32 {sT0}, {sT0}, {sT1}
    v_lshl_add_u32 v8, v1, 1, {sT0}
    v_mov_b32 v40, 0
    v_mov_b32 v41, 0
    v_mov_b32 v42, 0
    v_mov_b32 v43, 0
    s_lshl_b32 {sT0}, {sPR}, 2
    s_mov_b32 exec_hi, 0x00ffffff
    s_waitcnt lgkmcnt(0)
    global_load_dwordx4 v[10:13], v5, {X}
    global_load_dwordx4 v[14:17], v4, {WR}
    s_mov_b32 exec_hi, -1
    """)
    cst("issued")
    a(f"""
    s_load_dwordx4 s[36:39], {WS}, {WS_E}
    s_load_dword {sLD}, {LDT}, {sT0}
    s_add_u32 s22, s34, {WS_Y}
    s_addc_u32 s23, s35, 0
    """)
    a(f"""
    s_add_u32 s60, s34, {WS_XN}
    s_addc_u32 s61, s35, 0
    v_and_b32 v2, 15, v1
    v_lshrrev_b32 v3, 4, v1
    s_mov_b32 {sHI}, 0xffff0000
    s_mov_b32 {sONE}, 0x3f803f80
    s_mul_i32 {sT0}, {sWV}, 960
    s_add_u32 {sT0}, {sT0}, {LNX}
    v_add_u32 v18, {sT0}, v4
    v_mov_b32 v44, 0
    v_mov_b32 v45, 0
    v_mov_b32 v46, 0
    v_mov_b32 v47, 0
    v_and_b32 v50, 0x1f0, v0
    v_and_b32 v51, 3, v0
    v_lshlrev_b32 v50, 1, v50
    v_lshl_add_u32 v50, v51, 3, v50
    v_lshrrev_b32 v51, 2, v2
    s_movk_i32 {sT0}, 960
    v_mad_u32_u24 v50, v51, {sT0}, v50
    v_add_u32 v19, {LNX}, v50
    s_mul_i32 {sT0}, {sTB}, 7168
    v_add_u32 v49, {sT0}, v6
    s_lshl_b32 {sT0}, {sWV}, 4
    s_add_u32 {sT0}, {sT0}, {CANDL}
    v_mov_b32 v48, {sT0}
    global_store_dwordx4 v7, v[36:39], {YB} sc1
    v_lshrrev_b32 v52, 1, v0
    v_and_b32 v53, 1, v0
    s_lshl_b32 {sT0}, {sPR}, 5
    v_mul_u32_u24 v50, 7168, v52
    v_lshlrev_b32 v51, 4, v53
    v_add3_u32 v90, v50, v51, {sT0}
    s_lshl_b32 {sT0}, {sTB}, 5
    v_lshlrev_b32 v52, 13, v52
    v_add3_u32 v253, v52, v51, {sT0}
    """)
    wprefetch("p")
    a(f"""
    global_load_short_d16_hi v40, v8, {LOGA}
    global_load_short_d16_hi v41, v8, {AIM}
    global_load_short_d16_hi v42, v8, {CRE}
    global_load_short_d16_hi v43, v8, {CIM}
    s_mul_i32 {sT0}, {sCH}, {CHS}
    s_lshl_b32 {sT3}, {sQ}, 8
    s_add_u32 {sT0}, {sT0}, {sT3}
    s_mov_b32 m0, {sT0}
    v_mov_b32 v51, 0x3c00
    ds_write_addtid_b32 v51 offset:{21*RS}
    v_add_u32 v89, addr_tab-L_pc, v6
    v_add_u32 v88, 0x4000, v89
    v_add_u32 v87, 0x8000, v89
    v_add_u32 v86, 0x2000, v89
    v_add_u32 v85, 0x6000, v89
    """)
    a("L_ln:\ns_waitcnt lgkmcnt(0)")
    for i in range(4):
        a(f"s_andn2_b32 s{sMSK+i}, {TAGM}, s{36+i}\ns_sub_u32 s{sDEC+i}, {BIAS}, s{sMSK+i}")
    a(f"s_not_b32 {sT1}, s39\nv_mov_b32 v59, {sT1}\ns_lshl_b32 {sT2}, {sTB}, 3\ns_add_u32 {sT2}, {sT2}, {sWV}")
    a(f"""
    s_lshl_b32 {sT0}, {sLD}, 16
    s_and_b32 {sT1}, {sLD}, {sHI}
    s_cmp_eq_u32 {sCH}, 0
    s_cselect_b32 {sT0}, {sT0}, {sT1}
    v_mov_b32 v92, {fx(LOG2E)}
    v_mul_f32 v93, {sT0}, v92
    v_exp_f32 v93, v93
    v_mov_b32 v96, {fx(64.0)}
    v_cvt_pk_bf16_f32 v93, 0, v93
    v_mul_f32 v94, -v92, v93
    v_mul_f32 v95, 0.15915494, v93
    """)
    if opt.get("prio", 1): a(f"s_cmp_lt_u32 {sWV}, 4\ns_cbranch_scc1 L_np\ns_setprio 1\nL_np:")
    cst("prolog")
    a(f"s_mov_b32 exec_hi, 0x00ffffff\ns_waitcnt vmcnt(5)")
    stamp(1)
    a(f"v_lshlrev_b32 v20, 16, v10\nv_and_b32 v21, {sHI}, v10\nv_readfirstlane_b32 {sP}, v20")
    for i in range(1, 4): a(f"v_lshlrev_b32 v{20+2*i}, 16, v{10+i}\nv_and_b32 v{21+2*i}, {sHI}, v{10+i}")
    for i in range(4): a(f"v_pk_add_f32 v[{28+2*i}:{29+2*i}], v[{20+2*i}:{21+2*i}], {sPP} op_sel_hi:[1,0] neg_lo:[0,1] neg_hi:[0,1]")
    a(f"""
    v_pk_mul_f32 v[52:53], v[28:29], v[28:29]
    v_pk_add_f32 v[50:51], v[28:29], v[30:31]
    v_pk_fma_f32 v[52:53], v[30:31], v[30:31], v[52:53]
    v_pk_add_f32 v[50:51], v[50:51], v[32:33]
    v_pk_fma_f32 v[52:53], v[32:33], v[32:33], v[52:53]
    v_pk_add_f32 v[50:51], v[50:51], v[34:35]
    v_pk_fma_f32 v[52:53], v[34:35], v[34:35], v[52:53]
    v_add_f32 v44, v50, v51
    """)
    for i in range(4): a(f"v_dot2c_f32_bf16 v46, v{10+i}, v{14+i}\nv_dot2c_f32_bf16 v47, {sONE}, v{14+i}")
    a(f"""
    v_add_f32 v45, v52, v53
    ds_write_b128 v18, v[10:13]
    s_mov_b32 exec_hi, -1
    v_permlane32_swap_b32 v44, v45
    v_permlane32_swap_b32 v46, v47
    v_add_f32 v44, v44, v45
    v_add_f32 v46, v46, v47
    v_permlane16_swap_b32 v44, v46
    v_add_f32 v44, v44, v46
    v_add_f32_dpp v44, v44, v44 row_ror:8 row_mask:0xf bank_mask:0xf
    v_add_f32_dpp v44, v44, v44 row_ror:4 row_mask:0xf bank_mask:0xf
    v_add_f32_dpp v44, v44, v44 row_ror:2 row_mask:0xf bank_mask:0xf
    v_add_f32_dpp v44, v44, v44 row_ror:1 row_mask:0xf bank_mask:0xf
    v_mul_f32 v45, {fx(1.0/448)}, v44
    v_readlane_b32 {sT3}, v44, 16
    v_readlane_b32 {sT0}, v45, 0
    v_readlane_b32 {sT1}, v45, 32
    v_mov_b32 v50, {sT0}
    v_fma_f32 v51, -v50, v50, {sT1}
    v_add_f32 v50, {sP}, v50
    v_max_f32 v51, 0, v51
    v_cvt_pk_bf16_f32 v50, v50, v51
    v_and_b32 v51, {sHI}, v50
    v_lshlrev_b32 v50, 16, v50
    v_add_f32 v51, {fx(1e-5)}, v51
    v_cvt_pk_bf16_f32 v51, 0, v51
    v_sqrt_f32 v51, v51
    v_cvt_pk_bf16_f32 v51, 0, v51
    v_rcp_f32 v57, v51
    v_mul_f32 v52, {fx(2.0**-68)}, v57
    v_mul_f32 v58, -v50, v57
    v_mul_f32 v53, -v50, v52
    """)
    for i in range(4): a(f"v_pk_fma_f32 v[{20+2*i}:{21+2*i}], v[{20+2*i}:{21+2*i}], v[52:53], v[52:53] op_sel:[0,0,1] op_sel_hi:[1,0,1]")
    for i in range(4): a(f"v_cvt_pk_bf16_f32 v{28+i}, v{20+2*i}, v{21+2*i}")
    a(f"""
    s_mov_b32 exec_hi, 0x00ffffff
    ds_write_b128 v18, v[28:31] offset:7680
    s_mov_b32 exec_lo, 0
    s_mov_b32 exec_hi, 0x80000000
    v_mul_f32 v56, {sT3}, v57
    v_fmac_f32 v56, v44, v58
    v_cvt_pk_bf16_f32 v56, 0, v56
    v_or_b32 v56, {sT2}, v56
    ds_write_b128 v48, v[56:59]
    s_mov_b64 exec, -1
    """)
    cst("lnw")
    a("s_waitcnt vmcnt(4) lgkmcnt(0)\ns_barrier")
    cst("B1")
    a(f"""
    s_cmp_eq_u32 {sWV}, 7
    s_cbranch_scc1 L_cand
    ds_read_b64_tr_b16 v[20:21], v19 offset:7680
    ds_read_b64_tr_b16 v[22:23], v19 offset:{7680+3840}
    s_waitcnt lgkmcnt(0)
    """)
    for i in range(4): a(f"v_or_b32 v{20+i}, s{sMSK+i}, v{20+i}")
    a(f"""
    global_store_dwordx4 v49, v[20:23], {XNB} sc1
    v_lshlrev_b32 v254, 1, v0
    global_load_ushort v255, v254, {DSK}
    s_branch L_pub
    L_cand:
    v_and_b32 v50, 0x70, v4
    v_add_u32 v50, {CANDL}, v50
    ds_read_b128 v[56:59], v50
    s_lshl_b32 {sT0}, {sTB}, 4
    s_add_u32 {sT0}, {sT0}, {WS_CAND}
    v_mov_b32 v51, {sT0}
    s_waitcnt lgkmcnt(0)
    v_max_f32_dpp v50, v56, v56 row_ror:4 row_mask:0xf bank_mask:0xf
    v_max_f32_dpp v50, v50, v50 row_ror:2 row_mask:0xf bank_mask:0xf
    v_max_f32_dpp v50, v50, v50 row_ror:1 row_mask:0xf bank_mask:0xf
    v_cmp_eq_u32 vcc, v50, v56
    s_and_b32 exec_lo, vcc_lo, 0xff
    s_mov_b32 exec_hi, 0
    global_store_dwordx4 v51, v[56:59], {WS} sc1
    s_mov_b64 exec, -1
    v_mov_b32 v254, 0
    global_load_ushort v255, v254, {DSK}
    L_pub:
    """)
    stamp(2)
    a("s_cmp_ge_u32 s2, 224\ns_cbranch_scc1 L_ffn")
    a(f"""
    s_waitcnt vmcnt(2)
    global_load_dwordx4 v[100:103], v89, s[4:5]
    global_load_dwordx4 v[104:107], v86, s[4:5]
    global_load_dwordx4 v[108:111], v88, s[4:5]
    global_load_dwordx4 v[112:115], v85, s[4:5]
    global_load_dwordx4 v[116:119], v87, s[4:5]
    """)
    role[0] = "conv"
    pr = opt.get("kprio", (2, 1, 0, 1))
    def setp(o, y, tag):
        if o == y: a(f"s_setprio {o}")
        else: a(f"s_setprio {o}\ns_cmp_lt_u32 {sWV}, 4\ns_cbranch_scc1 L_sp{tag}\ns_setprio {y}\nL_sp{tag}:")
    setp(pr[0], pr[1], "a")
    a(f"""
    v_mul_f32 v40, v92, v40
    v_max_f32 v44, abs(v42), abs(v43)
    v_exp_f32 v40, v40
    v_max_f32_dpp v44, v44, v44 row_ror:8 row_mask:0xf bank_mask:0xf
    v_cvt_pk_bf16_f32 v40, 0, v40
    v_pk_mul_f32 v[40:41], v[40:41], v[94:95]
    v_max_f32_dpp v44, v44, v44 row_ror:4 row_mask:0xf bank_mask:0xf
    v_pk_mul_f32 v[24:25], v[40:41], v[96:97] op_sel_hi:[1,0]
    v_fract_f32 v41, v41
    v_max_f32_dpp v44, v44, v44 row_ror:2 row_mask:0xf bank_mask:0xf
    v_fract_f32 v25, v25
    v_exp_f32 v40, v40
    v_max_f32_dpp v44, v44, v44 row_ror:1 row_mask:0xf bank_mask:0xf
    v_cos_f32 v60, v41
    v_sin_f32 v61, v41
    v_max_f32_dpp v44, v44, v44 row_bcast:15 row_mask:0xa bank_mask:0xf
    v_exp_f32 v24, v24
    v_cos_f32 v72, v25
    v_max_f32_dpp v44, v44, v44 row_bcast:31 row_mask:0xc bank_mask:0xf
    v_sin_f32 v73, v25
    v_readlane_b32 {sT0}, v44, 63
    v_pk_mul_f32 v[60:61], v[60:61], v[40:41] op_sel_hi:[1,0]
    v_pk_mul_f32 v[72:73], v[72:73], v[24:25] op_sel_hi:[1,0]
    s_lshr_b32 {sT0}, {sT0}, 23
    s_max_u32 {sT0}, {sT0}, 14
    s_sub_u32 {sP}, 267, {sT0}
    s_lshl_b32 {sP}, {sP}, 23
    """)
    FR = 120; GR = 141; G0 = 21
    S = {1: 173, 2: 174, 4: 175, 256: 176, 512: 177, 1024: 178}
    H = list(range(8)) + [256,258,260,262,512,516,768,772,1024,1280,1536,1792,2048]
    F = {h: FR + i for i, h in enumerate(H)}
    def wr(reg): return f"ds_write_addtid_b32 v{reg} offset:{(reg-FR)*RS}"
    def sq(d, x):
        return [f"v_pk_mul_f32 v[{d}:{d+1}], v[{x}:{x+1}], v[{x}:{x+1}] op_sel:[0,0] op_sel_hi:[0,1]",
                f"v_pk_fma_f32 v[{d}:{d+1}], v[{x}:{x+1}], v[{x}:{x+1}], v[{d}:{d+1}] op_sel:[1,1,0] op_sel_hi:[1,0,1] neg_lo:[0,1,0]"]
    def cv(d, x, conj): return [f"v_cvt_pk_f16_f32 v{d}, v{x}, {'-' if conj else ''}v{x+1}"]
    def hm(d, x, w):
        return [f"v_pk_mul_f16 v{d}, v{x}, v{w} op_sel:[0,0] op_sel_hi:[0,1]",
                f"v_pk_fma_f16 v{d}, v{x}, v{w}, v{d} op_sel:[1,1,0] op_sel_hi:[1,0,1] neg_lo:[0,1,0]", wr(d)]
    c1 = sq(62, 60) + cv(S[1], 60, True) + sq(64, 62) + cv(S[2], 62, True) + sq(66, 64) + cv(S[4], 64, True) + sq(68, 66) + cv(GR+1, 66, False) \
         + sq(70, 68) + cv(GR+2, 68, False) + [wr(GR+1)] + cv(GR+4, 70, False) + [wr(GR+2), wr(GR+4)]
    c2 = sq(74, 72) + cv(GR+8, 72, False) + sq(76, 74) + cv(GR+16, 74, False) + [wr(GR+8)] + sq(78, 76) + cv(S[256], 76, True) + [wr(GR+16)] \
         + sq(80, 78) + cv(S[512], 78, True) + [f"v_pk_mul_f32 v[42:43], v[42:43], {sPP} op_sel_hi:[1,0]"] + cv(S[1024], 80, True) + cv(F[0], 42, True) \
         + [f"s_sub_u32 {sT0}, {sT0}, 12", wr(F[0])]
    inter(c1, c2)
    a(f"s_lshl_b32 {sT0}, {sT0}, 23\nv_mul_f32 v46, {sT0}, v93")
    cst("seeds")
    a(f"""
    s_cmp_ge_u32 {sWV}, 4
    s_cbranch_scc1 L_nopf
    global_load_dwordx4 v[244:247], v97, s[4:5]
    global_load_dwordx4 v[248:251], v97, s[4:5] offset:16
    global_load_dwordx2 v[98:99], v84, s[4:5]
    global_load_dword v9, v91, s[100:101]
    L_nopf:
    """)
    setp(pr[2], pr[3], "b")
    fl = [(1,0,1),(2,0,2),(4,0,4),(256,0,256),(3,1,2),(512,0,512),(5,1,4),(6,2,4),(7,3,4),(258,2,256),(260,4,256),(262,6,256),
          (516,4,512),(768,256,512),(772,260,512),(1024,0,1024),(1280,256,1024),(1536,512,1024),(1792,768,1024),(2048,1024,1024)]
    pl = [hm(F[d], F[x], S[w]) for d, x, w in fl]
    gl = []
    for b in range(1, 5):
        for j in range(1, 1 << b): gl.append(hm(GR + (1 << b) + j, GR + j, GR + (1 << b)))
    A_ = pl + gl[23:]; B_ = gl[:23]
    if opt.get("ppipe", 1):
        seq = [p for xy in zip(A_, B_) for p in xy]
        for i in range(len(seq) + 2):
            if i < len(seq): a(seq[i][0])
            if 1 <= i <= len(seq): a(seq[i-1][1])
            if i >= 2: a(seq[i-2][2])
    else:
        for x, y in zip(A_, B_): inter(x, y)
    stamp(3)
    KF = 180
    gather = f"global_load_dwordx4 v[36:39], v90, {XNB} sc1"
    g1 = opt.get("g1", "km")
    a(f"""
    s_cmp_lt_u32 {sWV}, 4
    s_cbranch_scc1 L_pf2
    v_mov_b32 v44, 0
    v_mov_b32 v45, 0
    s_waitcnt vmcnt(0)
    ds_write_b64 v118, v[44:45]
    L_pf2:
    s_waitcnt vmcnt(4)
    """)
    cst("tbl")
    if g1 == "gen": a(gather)
    for st in range(8):
        a(f"ds_read_b128 v[{KF+8*st}:{KF+3+8*st}], v100 offset:{32*st}")
        a(f"ds_read_b128 v[{KF+4+8*st}:{KF+7+8*st}], v100 offset:{G0*RS+32*st}")
        if st >= 4:
            s2_ = st - 4
            a(f"s_waitcnt lgkmcnt(8)")
            a(f"v_mfma_f32_32x32x16_f16 v[20:35], v[{KF+8*s2_}:{KF+3+8*s2_}], v[{KF+4+8*s2_}:{KF+7+8*s2_}], {'0' if s2_==0 else 'v[20:35]'}")
    for s2_ in range(4, 8):
        a(f"s_waitcnt lgkmcnt({2*(7-s2_)})")
        a(f"v_mfma_f32_32x32x16_f16 v[20:35], v[{KF+8*s2_}:{KF+3+8*s2_}], v[{KF+4+8*s2_}:{KF+7+8*s2_}], v[20:35]")
    if g1 == "km": a(gather)
    a(f"s_mul_i32 {sKC}, {sCH}, {KCS}\ns_mul_i32 {sTT}, {sCH}, {TTS}")
    cst("kmfma")
    for s_ in range(3):
        for i in range(2): a(f"v_pk_mul_f32 v[{20+4*s_+2*i}:{21+4*s_+2*i}], v[{20+4*s_+2*i}:{21+4*s_+2*i}], v[46:47] op_sel_hi:[1,0]")
        a(f"ds_write_b128 v101, v[{20+4*s_}:{23+4*s_}] offset:{4*RS*s_}")
    a("s_waitcnt lgkmcnt(0)\ns_barrier")
    cst("B2")
    for nq in range(4): a(f"ds_read_b128 v[{20+4*nq}:{23+4*nq}], v102 offset:{256*nq}")
    if g1 == "B2": a(gather)
    a(f"""
    s_waitcnt lgkmcnt(2)
    v_pk_add_f32 v[20:21], v[20:21], v[24:25]
    v_pk_add_f32 v[22:23], v[22:23], v[26:27]
    s_waitcnt lgkmcnt(0)
    v_pk_add_f32 v[28:29], v[28:29], v[32:33]
    v_pk_add_f32 v[30:31], v[30:31], v[34:35]
    v_pk_add_f32 v[20:21], v[20:21], v[28:29]
    v_pk_add_f32 v[22:23], v[22:23], v[30:31]
    v_cvt_pk_bf16_f32 v28, v20, v21
    v_cvt_pk_bf16_f32 v29, v22, v23
    ds_write_b16 v104, v28
    ds_write_b16_d16_hi v105, v28
    ds_write_b16 v106, v29
    ds_write_b16_d16_hi v107, v29
    """)
    for i in range(7): a(f"ds_read_u16 v{20+i}, v{108+i}")
    def check():
        a(f"""
        s_waitcnt vmcnt(0)
        v_xor_b32 v40, s{sMSK}, v36
        v_bitop3_b32 v40, v40, v37, s{sMSK+1} bitop3:0xf6
        v_bitop3_b32 v40, v40, v38, s{sMSK+2} bitop3:0xf6
        v_bitop3_b32 v40, v40, v39, s{sMSK+3} bitop3:0xf6
        v_and_b32 v40, {TAGM}, v40
        v_cmp_ne_u32 vcc, 0, v40
        """)
        for i in range(4): a(f"v_add_u32 v{36+i}, s{sDEC+i}, v{36+i}")
        a("ds_write_b128 v103, v[36:39]")
    check()
    a(f"""
    s_waitcnt lgkmcnt(4)
    v_lshl_or_b32 v28, v21, 16, v20
    v_lshl_or_b32 v29, v23, 16, v22
    v_lshl_or_b32 v30, v22, 16, v21
    v_lshl_or_b32 v32, v23, 16, v22
    ds_write_b64 v115, v[28:29]
    s_waitcnt lgkmcnt(2)
    v_lshl_or_b32 v31, v24, 16, v23
    v_lshl_or_b32 v33, v25, 16, v24
    v_lshl_or_b32 v34, v24, 16, v23
    v_lshl_or_b32 v35, v26, 16, v25
    s_cmp_lg_u32 {sQ}, 0
    s_cbranch_scc1 L_nox
    v_add_u32 v98, {sKC}, v98
    v_add_u32 v99, {sTT}, v99
    ds_read_u16 v27, v98
    L_nox:
    ds_write_b64 v115, v[30:31] offset:{TCS}
    ds_write_b64 v115, v[32:33] offset:{2*TCS}
    ds_write_b64 v115, v[34:35] offset:{3*TCS}
    s_cbranch_scc1 L_nox2
    s_waitcnt lgkmcnt(3)
    ds_write_b16 v99, v27
    L_nox2:
    """)
    stamp(4)
    a(f"""
    s_cbranch_vccz L_poll1_done
    s_mov_b32 {sCNT}, 0
    L_poll1:
    s_mov_b64 exec, vcc
    s_waitcnt lgkmcnt(0)
    {gather}
    s_add_u32 {sCNT}, {sCNT}, 1
    """)
    check()
    a(f"""
    s_cmp_ge_u32 {sCNT}, {SPIN}
    s_cbranch_scc1 L_poll1_out
    s_cbranch_vccnz L_poll1
    L_poll1_out:
    s_mov_b64 exec, -1
    L_poll1_done:
    s_setprio 0
    s_cmp_ge_u32 {sWV}, 4
    s_cbranch_scc1 L_helper
    s_bitcmp1_b32 {sWV}, 0
    s_cbranch_scc1 L_ty1
    """)
    def mstream(tiles):
        LOOK = opt.get("look", 14); MINL = opt.get("minlook", 9)
        nus = max(tiles) - 3
        a("s_waitcnt lgkmcnt(0)\ns_barrier")
        stamp(5)
        q = lambda r: f"v[{r}:{r+3}]"
        fin = [(ti, nu, c - 4 - nu) for nu in range(4) for ti, c in enumerate(tiles) if 0 <= c - 4 - nu]
        flat = []
        for rho in range(8):
            prs = []
            order = [(mu, ti) for mu in range(5 if rho == 0 else 4) for ti in range(len(tiles))]
            if rho == 7: order = [(mu, ti) for ti in range(len(tiles)) for mu in range(4)]
            for mu, ti in order:
                c = tiles[ti]
                if mu <= c and (mu < 4 or c >= 4): prs.append(dict(acc=20 + 4 * ti, A=("A", rho + 8 * mu), B=("B", 8 * (c - mu) - rho), ti=ti))
            nu = rho - 1
            if 0 <= nu < nus:
                br = 52 if nu % 2 == 0 else 36
                prs.insert(1, dict(acc=br, A=("W", nu), B=244, zero=True))
                prs.insert(3, dict(acc=br + 4, A=("W", nu), B=248, zero=True, cvt=[f"v_cvt_pk_bf16_f32 v{76+4*nu+r}, v{br+r}, v{br+4+r}" for r in range(4)]))
            k = 0
            for (ti, nu2, mu2) in list(fin):
                if nu2 + 2 <= rho <= 6 and k < (2 if rho < 6 else 9) and rho >= 3:
                    prs.insert(min(2 + 4 * k, len(prs)), dict(acc=20 + 4 * ti, A=76 + 4 * nu2, B=("Z", mu2), ti=ti)); fin.remove((ti, nu2, mu2)); k += 1
            flat += prs
        assert not fin
        pool = list(range(120, 244, 4)); pi = [0]; reg = {}
        loads = []; need = []
        for o in flat:
            for f in ("A", "B"):
                key = o[f]
                if isinstance(key, int): continue
                if key not in reg:
                    if key[0] == "Z": r = 60 + 4 * key[1]
                    else: r = pool[pi[0] % len(pool)]; pi[0] += 1
                    reg[key] = r
                    if key[0] == "B": loads.append(f"ds_read_b128 {q(r)}, v117 offset:{64*(key[1]+7)}")
                    elif key[0] == "Z":
                        loads.append(f"ds_read2_b32 v[{r}:{r+1}], v118 offset0:{16*key[1]+3} offset1:{16*key[1]+2}")
                        loads.append(f"ds_read2_b32 v[{r+2}:{r+3}], v118 offset0:{16*key[1]+1} offset1:{16*key[1]}")
                    else:
                        ad, of = ("v116", 64 * (32 - key[1])) if key[0] == "A" else ("v117", 424 + 512 * key[1])
                        loads.append(f"ds_read_b64 v[{r}:{r+1}], {ad} offset:{of}")
                        loads.append(f"ds_read_b64 v[{r+2}:{r+3}], {ad} offset:{of+8}")
                o[f] = reg[key]
            need.append(len(loads))
        last = {o["ti"]: i for i, o in enumerate(flat) if "ti" in o}
        issued = 0; done = 0; stores = 0
        def issue(k):
            nonlocal issued
            while issued < min(k, len(loads)):
                a(loads[issued]); issued += 1
        def wait(k):
            nonlocal done
            n = issued - k
            assert 0 <= n <= 15
            a(f"s_waitcnt lgkmcnt({n})"); done = k
        issue(LOOK)
        first = set(); fill = []
        def outp(ti):
            return [f"v_cvt_pk_bf16_f32 v{42+2*ti}, v{20+4*ti}, v{21+4*ti}", f"v_cvt_pk_bf16_f32 v{43+2*ti}, v{22+4*ti}, v{23+4*ti}",
                    f"ds_write_b64 v119, v[{42+2*ti}:{43+2*ti}] offset:{YL+512*tiles[ti]}"]
        for i, o in enumerate(flat):
            if need[i] > done:
                k = need[min(i + 1, len(flat) - 1)]
                wait(k if (issued - k >= MINL or (issued == len(loads) and k <= issued)) else need[i])
            z = o.get("zero") or o["acc"] not in first
            a(f"v_mfma_f32_16x16x32_bf16 {q(o['acc'])}, {q(o['A'])}, {q(o['B'])}, {'0' if z else q(o['acc'])}")
            first.add(o["acc"])
            for x in o.get("cvt", []): fill.append((i + 4, x))
            if "ti" in o and last[o["ti"]] == i:
                for x in outp(o["ti"]): fill.append((i + 4, x))
            nxt = need[min(i + 1, len(flat) - 1)]
            cnt = 2 if issued + 1 - nxt < MINL else 1
            b4 = issued
            issue(min(issued + cnt, done + 15))
            room = 2 - (issued - b4) - (1 if nxt > done else 0)
            while room > 0 and fill and fill[0][0] <= i and (not fill[0][1].startswith("ds_") or done == len(loads)):
                a(fill.pop(0)[1]); room -= 1
        assert issued == len(loads) and done == len(loads)
        cst("mfmadone")
        for _, x in fill: a(x)
        a("s_waitcnt lgkmcnt(0)")
    def epi_prep():
        a(f"""
        ds_read_b64_tr_b16 v[60:61], v19
        ds_read_b64_tr_b16 v[62:63], v19 offset:3840
        ds_read_b64_tr_b16 v[64:65], v19 offset:7680
        ds_read_b64_tr_b16 v[66:67], v19 offset:{7680+3840}
        v_mov_b32 v53, {Y_IDX}
        s_mul_i32 {sT0}, {sTB}, 7168
        s_add_u32 {sT0}, {sT0}, 3584
        v_add_u32 v254, {sT0}, v254
        s_mov_b32 {sT1}, {BIAS}
        s_movk_i32 {sT2}, 0x3f80
        s_mov_b32 {sT3}, 0x3f800000
        v_lshlrev_b32 v40, 16, v255
        v_add_f32 v40, 1.0, v40
        s_waitcnt lgkmcnt(0)
        """)
        for i in range(4):
            a(f"v_add_u32 v{64+i}, {sT1}, v{64+i}\nv_lshlrev_b32 v{70+2*i}, 16, v{60+i}\nv_and_b32 v{71+2*i}, {sHI}, v{60+i}")
        for i in range(4): a(f"v_lshlrev_b32 v{80+2*i}, 16, v{64+i}\nv_and_b32 v{81+2*i}, {sHI}, v{64+i}")
        for i in range(4): a(f"v_pk_fma_f32 v[{70+2*i}:{71+2*i}], v[{80+2*i}:{81+2*i}], v[40:41], v[{70+2*i}:{71+2*i}] op_sel_hi:[1,0,1]")
    mstream([5, 6, 7])
    a("s_branch L_convdone\nL_ty1:")
    mstream([0, 1, 2, 3, 4])
    a(f"""
    L_convdone:
    s_barrier
    """)
    stamp(6)
    a(f"""
    s_branch L_prep
    L_helper:
    s_waitcnt lgkmcnt(0)
    s_barrier
    s_or_b32 {sT0}, s2, {sCH}
    s_cmp_lg_u32 {sT0}, 0
    s_cbranch_scc1 L_noE
    v_not_b32 v28, s36
    v_not_b32 v29, s37
    v_not_b32 v30, s38
    v_not_b32 v31, s39
    v_mov_b32 v32, {WS_E}
    s_mov_b64 exec, 1
    global_store_dwordx4 v32, v[28:31], {WS} sc1
    s_mov_b64 exec, -1
    L_noE:
    """)
    epi_prep()
    a(f"""
    s_barrier
    ds_read_b128 v[28:31], v119 offset:2048
    ds_read_b128 v[32:35], v119
    s_waitcnt lgkmcnt(1)
    global_store_dwordx4 v7, v[28:31], {YB} sc1
    s_waitcnt lgkmcnt(0)
    global_store_dwordx4 v7, v[32:35], {YB} offset:-4096 sc1
    """)
    stamp(7)
    role[0] = "all"
    a(f"""
    s_waitcnt vmcnt(0)
    s_barrier
    s_cmp_eq_u32 {sWV}, 7
    s_cbranch_scc1 L_fin
    s_branch L_epi2
    L_prep:
    """)
    epi_prep()
    a(f"""
    s_waitcnt vmcnt(0)
    s_cmp_ge_u32 s2, 224
    s_cbranch_scc1 L_epi2
    s_barrier
    L_epi2:
    global_load_dwordx4 v[20:23], v253, {YB} sc1
    global_load_dword v24, v53, {YB} sc1
    s_mov_b32 {sCNT}, 0
    L_poll2:
    s_waitcnt vmcnt(0)
    v_max3_u32 v25, v20, v21, v22
    v_max3_u32 v25, v25, v23, v24
    v_cmp_eq_u32 vcc, -1, v25
    s_add_u32 {sCNT}, {sCNT}, 1
    s_cbranch_vccz L_poll2_done
    s_cmp_ge_u32 {sCNT}, {SPIN}
    s_cbranch_scc1 L_poll2_done
    s_mov_b64 exec, vcc
    global_load_dwordx4 v[20:23], v253, {YB} sc1
    global_load_dword v24, v53, {YB} sc1
    s_branch L_poll2
    L_poll2_done:
    s_mov_b64 exec, -1
    """)
    stamp(8)
    a(f"v_readfirstlane_b32 {sIDX}, v24")
    for i in range(8): a(f"v_dot2c_f32_bf16 v{70+i}, {sT3 if i & 1 else sT2}, v{20+i//2}")
    a(f"s_lshr_b32 {sT0}, {sIDX}, 3\ns_cmp_eq_u32 {sT0}, {sTB}\ns_cbranch_scc1 L_owner")
    ostf = opt.get("ostf", "sc1")
    def ost(r): return f"global_store_short{'_d16_hi' if r & 1 else ''} v254, v{20+r//2}, {OUT} offset:{896*(r-4)} {ostf}"
    for i in range(4):
        a(f"v_cvt_pk_bf16_f32 v{20+i}, v{70+2*i}, v{71+2*i}\n{ost(2*i)}\n{ost(2*i+1)}")
    a(f"s_branch L_fin\nL_owner:\ns_and_b32 {sT0}, {sIDX}, 7")
    for i in range(4): a(f"v_cvt_pk_bf16_f32 v{20+i}, v{70+2*i}, v{71+2*i}")
    for r in range(8): a(f"s_cmp_eq_u32 {sT0}, {r}\ns_cbranch_scc1 L_sk{r}\n{ost(r)}\nL_sk{r}:")
    a("s_branch L_fin")
    role[0] = "ffn"
    def perms(src, dst):
        for kp in range(4):
            for dw in range(4):
                a(f"v_perm_b32 v{dst+4*(2*dw)+kp}, v{src+4*(2*kp+1)+dw}, v{src+4*(2*kp)+dw}, {sT2}")
                a(f"v_perm_b32 v{dst+4*(2*dw+1)+kp}, v{src+4*(2*kp+1)+dw}, v{src+4*(2*kp)+dw}, {sT3}")
    def gemv(afrag, w, acc):
        for e in range(8): a(f"v_mfma_f32_16x16x32_bf16 v[{acc+4*e}:{acc+4*e+3}], v[{afrag}:{afrag+3}], v[{w+4*e}:{w+4*e+3}], 0")
    def fold(acc, res):
        for e in range(4): a(f"v_add_f32_dpp v{res+e}, v{acc+4*e+1}, v{acc+4*e} row_shl:8 row_mask:0xf bank_mask:0x3")
        for e in range(4, 8): a(f"v_add_f32_dpp v{res+e-4}, v{acc+4*e}, v{acc+4*e+1} row_shr:8 row_mask:0xf bank_mask:0xc")
    a(f"""
    L_ffn:
    s_cmp_eq_u32 {sWV}, 7
    s_cbranch_scc1 L_ffn7
    s_cmp_ge_u32 {sFI}, 28
    s_cbranch_scc1 L_spare
    v_lshrrev_b32 v50, 3, v2
    v_lshl_add_u32 v50, v50, 2, v3
    v_and_b32 v51, 7, v2
    v_lshlrev_b32 v51, 4, v51
    s_movk_i32 {sT0}, {8*3584}
    v_mad_u32_u24 v52, v50, {sT0}, v51
    s_mul_i32 {sT0}, {sWV}, {64*3584}
    s_lshl_b32 {sT1}, {sFI}, 7
    s_add_u32 {sT0}, {sT0}, {sT1}
    s_add_u32 {sT0}, {sT0}, 3584
    v_add_u32 v52, {sT0}, v52
    v_add_u32 v53, {3*3584}, v52
    v_add_u32 v54, {6*3584}, v52
    s_movk_i32 {sT0}, {8*896}
    v_mad_u32_u24 v55, v50, {sT0}, v51
    s_mul_i32 {sT0}, {sFI}, {64*896}
    s_lshl_b32 {sT1}, {sWV}, 7
    s_add_u32 {sT0}, {sT0}, {sT1}
    s_add_u32 {sT0}, {sT0}, 3584
    v_add_u32 v55, {sT0}, v55
    """)
    for (base, ptr) in ((60, WG_), (92, WU)):
        for e in range(8): a(f"global_load_dwordx4 v[{base+4*e}:{base+4*e+3}], v{52+e//3}, {ptr} offset:{3584*(e%3-1)}")
    for e in range(8): a(f"global_load_dwordx4 v[{124+4*e}:{127+4*e}], v55, {WD} offset:{896*(e-4)}")
    a(f"""
    s_mov_b32 {sT2}, 0x05040100
    s_mov_b32 {sT3}, 0x07060302
    v_and_b32 v50, 1, v2
    v_lshlrev_b32 v50, 6, v50
    v_lshl_add_u32 v50, v3, 4, v50
    s_lshl_b32 {sT0}, {sWV}, 7
    v_add_u32 v50, {sT0}, v50
    v_lshrrev_b32 v56, 3, v2
    v_lshlrev_b32 v56, 4, v56
    v_lshl_add_u32 v56, v51, 1, v56
    s_lshl_b32 {sT1}, {sWV}, 9
    v_add_u32 v56, {sT1}, v56
    v_lshlrev_b32 v57, 2, v1
    v_lshl_add_u32 v58, v1, 1, {sT0}
    s_lshl_b32 {sT0}, s2, 13
    s_lshl_b32 {sT1}, {sWV}, 8
    s_add_u32 {sT0}, {sT0}, {sT1}
    v_add_u32 v59, {sT0}, v4
    s_waitcnt vmcnt(16)
    """)
    perms(60, 156); a("s_waitcnt vmcnt(8)"); perms(92, 188); a("s_waitcnt vmcnt(0)"); perms(124, 220)
    stamp(3)
    a(f"s_barrier\nds_read_b128 v[20:23], v50 offset:{FXN}\ns_waitcnt lgkmcnt(0)")
    stamp(5)
    gemv(20, 156, 60); gemv(20, 188, 92)
    fold(60, 24); fold(92, 28)
    a(f"""
    s_mov_b64 exec, 0xffff
    ds_write_b128 v56, v[24:27] offset:{FGP}
    ds_write_b128 v56, v[28:31] offset:{FGP+256}
    s_mov_b64 exec, -1
    s_waitcnt lgkmcnt(0)
    s_barrier
    """)
    for p in range(7): a(f"ds_read2st64_b32 v[{24+2*p}:{25+2*p}], v57 offset0:{FGP//256+2*p} offset1:{FGP//256+2*p+1}")
    a(f"""
    s_waitcnt lgkmcnt(3)
    v_pk_add_f32 v[24:25], v[24:25], v[26:27]
    v_pk_add_f32 v[28:29], v[28:29], v[30:31]
    s_waitcnt lgkmcnt(0)
    v_pk_add_f32 v[32:33], v[32:33], v[34:35]
    v_pk_add_f32 v[24:25], v[24:25], v[28:29]
    v_pk_add_f32 v[32:33], v[32:33], v[36:37]
    v_pk_add_f32 v[24:25], v[24:25], v[32:33]
    v_mul_f32 v27, {fx(-LOG2E)}, v24
    v_mul_f32 v26, v24, v25
    v_exp_f32 v27, v27
    v_add_f32 v27, 1.0, v27
    v_rcp_f32 v27, v27
    v_mul_f32 v26, v26, v27
    v_cvt_pk_bf16_f32 v26, v26, v26
    ds_write_b16 v58, v26 offset:{FH}
    ds_read_b128 v[20:23], v50 offset:{FH}
    s_waitcnt lgkmcnt(0)
    """)
    gemv(20, 220, 60); fold(60, 24)
    a(f"""
    s_mov_b64 exec, 0xffff
    global_store_dwordx4 v59, v[24:27], {YB} sc1
    s_mov_b64 exec, -1
    """)
    stamp(7)
    a("s_branch L_prep\nL_spare:\ns_waitcnt vmcnt(0)\ns_barrier\ns_branch L_prep")
    role[0] = "ffn7"
    a(f"""
    L_ffn7:
    v_add_u32 v50, {WS_CAND}, v4
    s_not_b32 {sT3}, s39
    s_mov_b32 {sCNT}, 0
    s_waitcnt vmcnt(0)
    L_poll3:
    """)
    for i in range(4): a(f"global_load_dwordx4 v[{20+4*i}:{23+4*i}], v50, {WS} offset:{1024*i} sc1")
    a(f"""
    s_waitcnt vmcnt(0)
    v_xor_b32 v51, {sT3}, v23
    v_bitop3_b32 v51, v51, v27, {sT3} bitop3:0xf6
    v_bitop3_b32 v51, v51, v31, {sT3} bitop3:0xf6
    v_bitop3_b32 v51, v51, v35, {sT3} bitop3:0xf6
    v_cmp_ne_u32 vcc, 0, v51
    s_add_u32 {sCNT}, {sCNT}, 1
    s_cmp_ge_u32 {sCNT}, {SPIN}
    s_cbranch_scc1 L_poll3_done
    s_mov_b64 exec, vcc
    s_cbranch_execnz L_poll3
    L_poll3_done:
    s_mov_b64 exec, -1
    """)
    stamp(3)
    a(f"""
    s_cmp_ge_u32 {sFI}, 28
    s_cbranch_scc1 L_spare7
    v_max3_f32 v51, v20, v24, v28
    v_max_f32 v51, v51, v32
    v_cmp_eq_u32 vcc, v51, v24
    v_max_f32_dpp v52, v51, v51 row_ror:8 row_mask:0xf bank_mask:0xf
    v_cmp_eq_u32 s[62:63], v51, v28
    v_cndmask_b32 v21, v21, v25, vcc
    v_max_f32_dpp v52, v52, v52 row_ror:4 row_mask:0xf bank_mask:0xf
    v_cndmask_b32 v22, v22, v26, vcc
    v_cmp_eq_u32 vcc, v51, v32
    v_max_f32_dpp v52, v52, v52 row_ror:2 row_mask:0xf bank_mask:0xf
    v_cndmask_b32 v21, v21, v29, s[62:63]
    v_cndmask_b32 v22, v22, v30, s[62:63]
    v_max_f32_dpp v52, v52, v52 row_ror:1 row_mask:0xf bank_mask:0xf
    v_cndmask_b32 v21, v21, v33, vcc
    v_cndmask_b32 v22, v22, v34, vcc
    v_max_f32_dpp v52, v52, v52 row_bcast:15 row_mask:0xa bank_mask:0xf
    v_max_f32_dpp v52, v52, v52 row_bcast:31 row_mask:0xc bank_mask:0xf
    v_readlane_b32 {sP}, v52, 63
    s_and_b32 {sIDX}, {sP}, 0x7ff
    s_mul_i32 {sT0}, {sIDX}, 896
    v_add_u32 v53, {sT0}, v4
    s_mov_b32 exec_hi, 0x00ffffff
    global_load_dwordx4 v[10:13], v53, {X}
    s_mov_b32 exec_hi, -1
    v_cmp_eq_u32 vcc, {sP}, v51
    s_ff1_i32_b64 {sT1}, vcc
    s_and_b32 {sT1}, {sT1}, 63
    v_readlane_b32 {sT2}, v21, {sT1}
    v_readlane_b32 {sT3}, v22, {sT1}
    s_cmp_lg_u32 {sFI}, 0
    s_cbranch_scc1 L_noidx
    v_mov_b32 v54, {Y_IDX}
    v_mov_b32 v55, {sIDX}
    s_mov_b64 exec, 1
    global_store_dword v54, v55, {YB} sc1
    s_mov_b64 exec, -1
    s_waitcnt vmcnt(1)
    s_branch L_idx2
    L_noidx:
    s_waitcnt vmcnt(0)
    L_idx2:
    """)
    stamp(4)
    for i in range(4): a(f"v_lshlrev_b32 v{20+2*i}, 16, v{10+i}\nv_and_b32 v{21+2*i}, {sHI}, v{10+i}")
    for i in range(4): a(f"v_pk_fma_f32 v[{20+2*i}:{21+2*i}], v[{20+2*i}:{21+2*i}], s[46:47], s[46:47] op_sel:[0,0,1] op_sel_hi:[1,0,1]")
    for i in range(4): a(f"v_cvt_pk_bf16_f32 v{28+i}, v{20+2*i}, v{21+2*i}")
    a(f"""
    ds_write_b128 v4, v[28:31] offset:{FXN}
    ds_write_b128 v4, v[10:13] offset:{FXR}
    s_waitcnt lgkmcnt(0)
    s_barrier
    s_and_b32 {sT1}, {sFI}, 3
    s_lshl_b32 {sT1}, {sT1}, 2
    v_lshrrev_b32 v50, 2, v2
    v_add_u32 v50, {sT1}, v50
    v_and_b32 v51, 7, v50
    v_lshrrev_b32 v50, 3, v50
    v_lshlrev_b32 v51, 3, v51
    v_lshl_add_u32 v50, v50, 2, v51
    v_and_b32 v51, 3, v2
    s_lshr_b32 {sT1}, {sFI}, 2
    s_lshl_b32 {sT1}, {sT1}, 6
    v_add3_u32 v50, v50, v51, {sT1}
    v_lshlrev_b32 v51, 1, v50
    global_load_ushort v40, v51, {DSK}
    ds_read_u16 v41, v51 offset:{FXN}
    ds_read_u16 v42, v51 offset:{FXR}
    v_add_u32 v53, {sT0}, v51
    v_lshrrev_b32 v52, 1, v50
    v_and_b32 v50, 1, v50
    v_lshlrev_b32 v52, 13, v52
    v_lshl_add_u32 v52, v50, 4, v52
    s_lshr_b32 {sT1}, {sIDX}, 3
    s_lshl_b32 {sT1}, {sT1}, 5
    s_and_b32 {sT2}, {sIDX}, 6
    s_lshl_b32 {sT2}, {sT2}, 1
    s_add_u32 {sT1}, {sT1}, {sT2}
    v_add_u32 v52, {sT1}, v52
    v_lshlrev_b32 v54, 13, v3
    v_lshl_add_u32 v54, v2, 2, v54
    s_lshl_b32 {sT1}, {sFI}, 6
    s_add_u32 {sT1}, {sT1}, {Y_PART}
    v_add_u32 v54, {sT1}, v54
    s_barrier
    """)
    for p in range(1, 7): a(f"v_add_u32 v{54+p}, {32768*p}, v54")
    a(f"""
    s_and_b32 {sT1}, {sP}, {sHI}
    v_mov_b32 v43, {sT1}
    v_mul_f32 v43, {fx(-LOG2E)}, v43
    v_exp_f32 v43, v43
    v_add_f32 v43, 1.0, v43
    v_rcp_f32 v43, v43
    s_waitcnt vmcnt(0) lgkmcnt(0)
    v_lshlrev_b32 v40, 16, v40
    v_lshlrev_b32 v41, 16, v41
    v_lshlrev_b32 v42, 16, v42
    v_add_f32 v40, 1.0, v40
    v_fmac_f32 v42, v40, v41
    s_bitcmp1_b32 {sIDX}, 0
    s_cselect_b32 {sT1}, 16, 0
    s_lshl_b32 {sT1}, 0x3f80, {sT1}
    s_mov_b32 {sCNT}, 0
    L_poll4:
    """)
    for p in range(7): a(f"global_load_dword v{20+p}, v{54+p}, {YB} sc1")
    a(f"""
    global_load_dword v27, v52, {YB} sc1
    s_waitcnt vmcnt(0)
    v_max3_u32 v28, v20, v21, v22
    v_max3_u32 v29, v23, v24, v25
    v_max3_u32 v28, v28, v26, v27
    v_max_u32 v28, v28, v29
    v_cmp_eq_u32 vcc, -1, v28
    s_add_u32 {sCNT}, {sCNT}, 1
    s_cmp_ge_u32 {sCNT}, {SPIN}
    s_cbranch_scc1 L_poll4_done
    s_mov_b64 exec, vcc
    s_cbranch_execnz L_poll4
    L_poll4_done:
    s_mov_b64 exec, -1
    """)
    stamp(8)
    a(f"""
    v_pk_add_f32 v[20:21], v[20:21], v[22:23]
    v_add_f32 v24, v24, v26
    v_dot2c_f32_bf16 v42, {sT1}, v27
    v_pk_add_f32 v[20:21], v[20:21], v[24:25]
    v_add_f32 v20, v20, v21
    v_mov_b32 v21, v20
    v_permlane32_swap_b32 v20, v21
    v_add_f32 v20, v20, v21
    v_mov_b32 v21, v20
    v_permlane16_swap_b32 v20, v21
    v_add_f32 v20, v20, v21
    v_fmac_f32 v42, v20, v43
    v_cvt_pk_bf16_f32 v20, v42, v42
    s_mov_b64 exec, 0xffff
    global_store_short v53, v20, {OUT} {ostf}
    s_mov_b64 exec, -1
    s_branch L_fin
    L_spare7:
    s_barrier
    L_fin:
    """)
    if diag:
        a("s_waitcnt vmcnt(0)")
        stamp(9)
        a(f"""
        s_lshl_b32 {sT0}, s2, 3
        s_add_u32 {sT0}, {sT0}, {sWV}
        s_lshl_b32 {sT0}, {sT0}, 6
        s_add_u32 {sT0}, {sT0}, {WS_STAMP}
        v_mov_b32 v50, {sT0}
        """)
        for i in range(10): a(f"v_mov_b32 v{20+i}, s{64+2*i}")
        a(f"v_mov_b32 v30, {sCNT}\nv_mov_b32 v31, 0\ns_mov_b64 exec, 1")
        for i in range(3): a(f"global_store_dwordx4 v50, v[{20+4*i}:{23+4*i}], {WS} offset:{16*i}")
    if opt.get("cyc"):
        a("s_waitcnt vmcnt(0)")
        cst("end")
        a(f"""
        s_lshl_b32 {sT0}, s2, 3
        s_add_u32 {sT0}, {sT0}, {sWV}
        s_lshl_b32 {sT0}, {sT0}, 7
        s_add_u32 {sT0}, {sT0}, {WS_STAMP}
        v_mov_b32 v50, {sT0}
        """)
        for i in range(28): a(f"v_mov_b32 v{20+i}, s{68+i}")
        a("s_mov_b64 exec, 1")
        for i in range(7): a(f"global_store_dwordx4 v50, v[{20+4*i}:{23+4*i}], {WS} offset:{16*i}")
    if opt.get("hold"):
        a(f"""
        L_hold:
        s_memrealtime s[66:67]
        s_waitcnt lgkmcnt(0)
        s_sub_u32 s66, s66, s64
        s_cmp_lt_u32 s66, {opt['hold']}
        s_cbranch_scc1 L_hold
        """)
    a("L_end:\ns_endpgm")
    rep = []
    body = hz.fix(a.text(), rep)
    if opt.get("verbose"):
        for r in rep: print("nop", r)
    if opt.get("align", 1): body = align.fix(body)
    body += "\n.p2align 7\n"
    for nm, tb in (("box_tab", box_table()), ("xtra_tab", extra_table()), ("addr_tab", addr_table())):
        body += f".type {nm},@object\n{nm}:\n"
        for i in range(0, len(tb), 16): body += ".long " + ",".join(str(v) for v in tb[i:i+16]) + "\n"
        body += f".size {nm}, {4*len(tb)}\n"
    body += "L_code_end:\n"
    return single_file(body, 256, 512, LDS_BYTES, 256, sgpr=102)

def emit(name, opt):
    open(f"{name}.s", "w").write(gen(dict(opt)))
    open(f"{name}_diag.s", "w").write(gen(dict(opt, diag=True, verbose=False)))
    o = dict(opt, cyc=True, verbose=False)
    open(f"{name}_cyc.s", "w").write(gen(o))
    open(f"{name}_cyc.names", "w").write(" ".join(o["cnames"]))

if __name__ == "__main__":
    base = {"ppipe": 0, "kprio": (1, 1, 0, 0)}
    emit("k4", dict(base, verbose="-v" in sys.argv))
    emit("k4a", dict(base, kprio=(2, 1, 0, 1)))
    emit("k4b", dict(base, g1="B2"))
    emit("k4c", dict(base, g1="gen"))
```

```python
import sys, struct
from asmlib import *
import hz, align

def f2u(x): return struct.unpack("<I", struct.pack("<f", x))[0]
def fx(x): return hex(f2u(x))

WS_E    = 0x0
WS_CAND = 0x1000
WS_XN   = 0x100000
WS_Y    = 0x300000
Y_PART  = 224 * 8192
Y_IDX   = Y_PART + 4096
WS_STAMP= 0x800000
RS    = 1040
CHS   = 53 * RS
LNX   = 110336
LNN   = LNX + 7680
CANDL = LNN + 7680
KC    = CANDL + 128 + 16
KCS   = 1376
ZT    = 1092
TT    = 129152
TCS   = 2240
TTS   = 4 * TCS
U     = TT + 2 * TTS
US    = 4672
LDS_BYTES = U + 2 * US
YL    = 0
YP    = 8192
FXN = 0; FXR = 1024; FGP = 2048; FH = 8192
TAGM = 0x60006000
BIAS = (68 << 7) * 0x10001
SPIN = 200000
LOG2E = 1.4426950408889634

def box_table():
    out = []
    for l in range(64):
        i, g = l & 15, l >> 4
        for (lo, hi) in ((-4, 4), (5, 11)):
            for dw in range(4):
                v = 0
                for hf in range(2):
                    e = i + 12 - (8 * g + 2 * dw + hf)
                    if lo <= e <= hi: v |= 0x3f80 << (16 * hf)
                out.append(v)
    return out

def bf16_round_int(l):
    u = f2u(float(l)); u = (u + 0x7fff + ((u >> 16) & 1)) >> 16
    return int(struct.unpack("<f", struct.pack("<I", u << 16))[0])
def ci_of(l):
    if l < 256: return l
    p = bf16_round_int(l); sh = p.bit_length() - 8
    return 128 * sh + (p >> sh)
JUNK = CANDL + 128
def addr_table():
    pads = []
    for ch in range(2):
        pads += [U + ch * US + 8 * i for i in range(60)]
        for c in range(4):
            pads += [TT + ch * TTS + c * TCS + 8 * i for i in range(4)] + [TT + ch * TTS + c * TCS + 2112 + 8 * i for i in range(4)]
        pads += [KC + ch * KCS - 8] + [KC + ch * KCS + ZT - 60 + 8 * i for i in range(8)] + [KC + ch * KCS + ZT + 252]
    assert len(pads) <= 256 and all(p % 8 == 0 for p in pads)
    T = [[0] * 4 * 512 for _ in range(5)]
    for tid in range(512):
        wv, l = tid >> 6, tid & 63
        ch = (wv >> 1) & 1; q = (wv & 1) + 2 * (wv >> 2)
        i, g = l & 15, l >> 4; jp, h = l & 31, l >> 5
        kc = KC + ch * KCS; tt = TT + ch * TTS; st = ch * CHS + q * 256
        slot = lambda s_, ln: ch * CHS + (4 * s_ + (ln >> 4)) * RS + (ln & 15) * 16
        s_, ln = (0, l) if q == 3 else (1, l)
        if q == 2 and l == 63: s_ = 0
        if q == 0 and h == 0: s_ = 2
        if q == 1 and l == 0: s_, ln = 2, 32
        j2, h2 = ln & 31, ln >> 5
        if s_ == 0: w = [kc + 2 * (8 * j2 + 4 * h2 + r) for r in range(4)]
        elif s_ == 1 and h2 == 0: w = [kc + 2 * (256 + 4 * j2 + r) for r in range(4)]
        elif s_ == 1: w = [kc + 2 * (384 + 2 * j2 + (r & 1) + 64 * (r >> 1)) for r in range(4)]
        elif h2 == 0:
            w = [kc + ZT + 2 * (32 * r + j2) for r in range(4)]
            if j2 < 2: w[0] = kc + 2 * (512 + j2)
        else: w = [kc + ZT + 2 * 128, JUNK, JUNK, JUNK]
        lh = 1023 - 256 * q - 4 * l
        e = [kc + 2 * ci_of(lh - k) for k in range(7)]
        vals = [st + jp * RS + 16 * h, st + g * RS + 16 * i, slot(s_, ln), U + (tid & 1) * US + 480 + 16 * (tid >> 1)] + w + e + [tt + 64 + 512 * q + 8 * l]
        if wv < 4:
            c = (15 - i) & 3; b = g >> 1
            vals += [tt + c * TCS + 2 * (15 - i - c + 8 * g), U + ch * US + 32 * i + 16 * g, kc + ZT - 8 + 4 * (i - 4 * g),
                     YL + ch * 4096 + 16 * ((i ^ (ch | b << 3)) + 16 * b) + 8 * (g & 1)]
        else:
            t = tid - 256; c2, b, j = l & 1, (l >> 1) & 1, l >> 2
            vals += [0, 0, pads[t] if t < len(pads) else JUNK, YL + c2 * 4096 + 512 * (wv - 4) + 16 * ((j ^ (c2 | b << 3)) + 16 * b)]
        for k, v in enumerate(vals): T[k >> 2][4 * tid + (k & 3)] = v
    return [v for t in T for v in t]
def extra_table():
    out = []
    for l in range(64):
        c, eps = l >> 4, l & 15; x = eps + c
        ci = -1 if x < 4 else 513 if x < 11 else 512 if x < 18 else 511
        out += [KC + 2 * ci, TT + c * TCS + 32 + 2 * eps]
    return out

def gen(opt):
    diag = opt.get("diag", False)
    a = Asm()
    role = ["all"]
    cnames = opt.setdefault("cnames", [])
    def cst(name):
        if opt.get("cyc"):
            if name not in cnames: cnames.append(name)
            i = cnames.index(name); assert i < 28
            a(f"s_memtime s[66:67]\ns_waitcnt lgkmcnt(0)\ns_mov_b32 s{68+i}, s66")
    def stamp(i):
        if diag: a(f"s_memrealtime s[{64+2*i}:{65+2*i}]\ns_waitcnt lgkmcnt(0)")
        elif opt.get("cyc"): cst(f"{role[0]}{i}")
        elif opt.get("holdat") == (role[0], i): a(f"s_memrealtime s[64:65]\ns_waitcnt lgkmcnt(0)")
    def inter(*ls):
        for i in range(max(len(x) for x in ls)):
            for x in ls:
                if i < len(x): a(x[i])
    sWV="s3"; sTB="s6"; sPR="s7"; sCH="s40"; sQ="s41"; sP="s42"; sPP="s[42:43]"; sT0="s44"; sT1="s45"; sT2="s46"; sT3="s47"
    sLD="s48"; sIDX="s49"; sCNT="s50"; sFI="s51"; sDEC=52; sMSK=56; sHI="s96"; sONE="s97"; sKC="s98"; sTT="s99"
    X="s[8:9]"; LOGA="s[10:11]"; AIM="s[12:13]"; CRE="s[14:15]"; CIM="s[16:17]"; LDT="s[18:19]"; DSK="s[20:21]"
    WR="s[24:25]"; WG_="s[26:27]"; WU="s[28:29]"; WD="s[30:31]"; OUT="s[32:33]"; WS="s[34:35]"
    YB="s[22:23]"; XNB="s[60:61]"
    pf = opt.get("pf", "late")
    def wprefetch(tag):
        a(f"""
        s_lshr_b32 {sT0}, s2, 3
        s_mul_hi_u32 {sT1}, {sT0}, 0x24924925
        s_mul_i32 {sT2}, {sT1}, 7
        s_sub_u32 {sT0}, {sT0}, {sT2}
        s_lshl_b32 {sT1}, {sT1}, 3
        s_and_b32 {sT2}, s2, 7
        s_add_u32 {sT1}, {sT1}, {sT2}
        s_min_u32 {sT1}, {sT1}, 27
        s_lshl_b32 {sT0}, {sT0}, 6
        v_add_u32 v51, {sT0}, v1
        s_cmp_eq_u32 {sWV}, 0
        s_cselect_b64 s[100:101], {WG_}, {WU}
        s_cmp_lt_u32 {sWV}, 2
        s_cselect_b64 s[100:101], s[100:101], {WD}
        s_movk_i32 {sT0}, 128
        s_cselect_b32 {sT2}, 3584, {sT0}
        s_cselect_b32 {sT0}, {sT0}, 57344
        s_mul_i32 {sT0}, {sT0}, {sT1}
        v_mul_u32_u24 v51, {sT2}, v51
        v_add_u32 v91, {sT0}, v51
        v_lshlrev_b32 v51, 5, v1
        v_add_u32 v97, box_tab-L_pc, v51
        v_lshlrev_b32 v51, 3, v1
        v_add_u32 v84, xtra_tab-L_pc, v51
        """)
    if diag or opt.get("hold"): a("s_memrealtime s[64:65]")
    if opt.get("cyc"):
        for i in range(28): a(f"s_mov_b32 s{68+i}, 0")
        cst("start")
    a(f"""
    s_cmp_ge_u32 s2, 256
    s_cbranch_scc1 L_end
    s_load_dwordx16 s[8:23], s[0:1], 0
    s_load_dwordx8 s[24:31], s[0:1], 64
    s_load_dwordx2 {OUT}, s[0:1], 96
    s_load_dwordx2 {WS}, s[0:1], 112
    s_getpc_b64 s[4:5]
    L_pc:
    v_lshrrev_b32 v2, 6, v0
    v_lshrrev_b32 v3, 2, v0
    v_readfirstlane_b32 {sWV}, v2
    s_bfe_u32 {sT0}, s2, 0x20003
    s_lshl_b32 {sT0}, {sT0}, 14
    v_lshl_add_u32 v3, v3, 7, {sT0}
    v_min_u32 v3, L_code_end-L_pc-4, v3
    global_load_dword v9, v3, s[4:5]
    v_and_b32 v1, 63, v0
    s_and_b32 {sT0}, s2, 7
    s_lshr_b32 {sT1}, s2, 3
    s_lshl_b32 {sTB}, {sT0}, 5
    s_add_u32 {sTB}, {sTB}, {sT1}
    s_mul_i32 {sPR}, {sT0}, 28
    s_add_u32 {sPR}, {sPR}, {sT1}
    s_lshl_b32 {sT2}, {sTB}, 3
    s_add_u32 {sT2}, {sT2}, {sWV}
    s_mul_i32 {sT3}, {sT2}, 896
    v_lshlrev_b32 v4, 4, v1
    v_add_u32 v5, {sT3}, v4
    s_bfe_u32 {sCH}, {sWV}, 0x10001
    s_lshr_b32 {sQ}, {sWV}, 2
    s_lshl_b32 {sQ}, {sQ}, 1
    s_and_b32 {sT0}, {sWV}, 1
    s_or_b32 {sQ}, {sQ}, {sT0}
    s_sub_u32 {sFI}, s2, 224
    v_mov_b32 v36, -1
    v_mov_b32 v37, -1
    v_mov_b32 v38, -1
    v_mov_b32 v39, -1
    v_lshlrev_b32 v6, 4, v0
    s_cmp_ge_u32 s2, 224
    s_cselect_b32 {sT0}, s2, {sPR}
    s_cselect_b32 {sPR}, 0, {sPR}
    s_lshl_b32 {sT0}, {sT0}, 13
    v_add_u32 v7, {sT0}, v6
    s_lshl_b32 {sT0}, {sPR}, 1
    s_add_u32 {sT0}, {sT0}, {sCH}
    s_lshl_b32 {sT0}, {sT0}, 9
    s_lshl_b32 {sT1}, {sQ}, 7
    s_add_u32 {sT0}, {sT0}, {sT1}
    v_lshl_add_u32 v8, v1, 1, {sT0}
    v_mov_b32 v40, 0
    v_mov_b32 v41, 0
    v_mov_b32 v42, 0
    v_mov_b32 v43, 0
    s_lshl_b32 {sT0}, {sPR}, 2
    s_mov_b32 exec_hi, 0x00ffffff
    s_waitcnt lgkmcnt(0)
    global_load_dwordx4 v[10:13], v5, {X}
    global_load_dwordx4 v[14:17], v4, {WR}
    s_mov_b32 exec_hi, -1
    """)
    cst("issued")
    a(f"""
    s_load_dwordx4 s[36:39], {WS}, {WS_E}
    s_load_dword {sLD}, {LDT}, {sT0}
    s_add_u32 s22, s34, {WS_Y}
    s_addc_u32 s23, s35, 0
    """)
    a(f"""
    s_add_u32 s60, s34, {WS_XN}
    s_addc_u32 s61, s35, 0
    v_and_b32 v2, 15, v1
    v_lshrrev_b32 v3, 4, v1
    s_mov_b32 {sHI}, 0xffff0000
    s_mov_b32 {sONE}, 0x3f803f80
    s_mul_i32 {sT0}, {sWV}, 960
    s_add_u32 {sT0}, {sT0}, {LNX}
    v_add_u32 v18, {sT0}, v4
    v_mov_b32 v44, 0
    v_mov_b32 v45, 0
    v_mov_b32 v46, 0
    v_mov_b32 v47, 0
    v_and_b32 v50, 0x1f0, v0
    v_and_b32 v51, 3, v0
    v_lshlrev_b32 v50, 1, v50
    v_lshl_add_u32 v50, v51, 3, v50
    v_lshrrev_b32 v51, 2, v2
    s_movk_i32 {sT0}, 960
    v_mad_u32_u24 v50, v51, {sT0}, v50
    v_add_u32 v19, {LNX}, v50
    s_mul_i32 {sT0}, {sTB}, 7168
    v_add_u32 v49, {sT0}, v6
    s_lshl_b32 {sT0}, {sWV}, 4
    s_add_u32 {sT0}, {sT0}, {CANDL}
    v_mov_b32 v48, {sT0}
    global_store_dwordx4 v7, v[36:39], {YB} sc1
    v_lshrrev_b32 v52, 1, v0
    v_and_b32 v53, 1, v0
    s_lshl_b32 {sT0}, {sPR}, 5
    v_mul_u32_u24 v50, 7168, v52
    v_lshlrev_b32 v51, 4, v53
    v_add3_u32 v90, v50, v51, {sT0}
    s_lshl_b32 {sT0}, {sTB}, 5
    v_lshlrev_b32 v52, 13, v52
    v_add3_u32 v253, v52, v51, {sT0}
    """)
    wprefetch("p")
    a(f"""
    global_load_short_d16_hi v40, v8, {LOGA}
    global_load_short_d16_hi v41, v8, {AIM}
    global_load_short_d16_hi v42, v8, {CRE}
    global_load_short_d16_hi v43, v8, {CIM}
    s_mul_i32 {sT0}, {sCH}, {CHS}
    s_lshl_b32 {sT3}, {sQ}, 8
    s_add_u32 {sT0}, {sT0}, {sT3}
    s_mov_b32 m0, {sT0}
    v_mov_b32 v51, 0x3c00
    ds_write_addtid_b32 v51 offset:{21*RS}
    v_add_u32 v89, addr_tab-L_pc, v6
    v_add_u32 v88, 0x4000, v89
    v_add_u32 v87, 0x8000, v89
    v_add_u32 v86, 0x2000, v89
    v_add_u32 v85, 0x6000, v89
    """)
    a("L_ln:\ns_waitcnt lgkmcnt(0)")
    for i in range(4):
        a(f"s_andn2_b32 s{sMSK+i}, {TAGM}, s{36+i}\ns_sub_u32 s{sDEC+i}, {BIAS}, s{sMSK+i}")
    a(f"s_not_b32 {sT1}, s39\nv_mov_b32 v59, {sT1}\ns_lshl_b32 {sT2}, {sTB}, 3\ns_add_u32 {sT2}, {sT2}, {sWV}")
    a(f"""
    s_lshl_b32 {sT0}, {sLD}, 16
    s_and_b32 {sT1}, {sLD}, {sHI}
    s_cmp_eq_u32 {sCH}, 0
    s_cselect_b32 {sT0}, {sT0}, {sT1}
    v_mov_b32 v92, {fx(LOG2E)}
    v_mul_f32 v93, {sT0}, v92
    v_exp_f32 v93, v93
    v_mov_b32 v96, {fx(64.0)}
    v_cvt_pk_bf16_f32 v93, 0, v93
    v_mul_f32 v94, -v92, v93
    v_mul_f32 v95, 0.15915494, v93
    """)
    if opt.get("prio", 1): a(f"s_cmp_lt_u32 {sWV}, 4\ns_cbranch_scc1 L_np\ns_setprio 1\nL_np:")
    cst("prolog")
    a(f"s_mov_b32 exec_hi, 0x00ffffff\ns_waitcnt vmcnt(5)")
    stamp(1)
    a(f"v_lshlrev_b32 v20, 16, v10\nv_and_b32 v21, {sHI}, v10\nv_readfirstlane_b32 {sP}, v20")
    for i in range(1, 4): a(f"v_lshlrev_b32 v{20+2*i}, 16, v{10+i}\nv_and_b32 v{21+2*i}, {sHI}, v{10+i}")
    for i in range(4): a(f"v_pk_add_f32 v[{28+2*i}:{29+2*i}], v[{20+2*i}:{21+2*i}], {sPP} op_sel_hi:[1,0] neg_lo:[0,1] neg_hi:[0,1]")
    a(f"""
    v_pk_mul_f32 v[52:53], v[28:29], v[28:29]
    v_pk_add_f32 v[50:51], v[28:29], v[30:31]
    v_pk_fma_f32 v[52:53], v[30:31], v[30:31], v[52:53]
    v_pk_add_f32 v[50:51], v[50:51], v[32:33]
    v_pk_fma_f32 v[52:53], v[32:33], v[32:33], v[52:53]
    v_pk_add_f32 v[50:51], v[50:51], v[34:35]
    v_pk_fma_f32 v[52:53], v[34:35], v[34:35], v[52:53]
    v_add_f32 v44, v50, v51
    """)
    for i in range(4): a(f"v_dot2c_f32_bf16 v46, v{10+i}, v{14+i}\nv_dot2c_f32_bf16 v47, {sONE}, v{14+i}")
    a(f"""
    v_add_f32 v45, v52, v53
    ds_write_b128 v18, v[10:13]
    s_mov_b32 exec_hi, -1
    v_permlane32_swap_b32 v44, v45
    v_permlane32_swap_b32 v46, v47
    v_add_f32 v44, v44, v45
    v_add_f32 v46, v46, v47
    v_permlane16_swap_b32 v44, v46
    v_add_f32 v44, v44, v46
    v_add_f32_dpp v44, v44, v44 row_ror:8 row_mask:0xf bank_mask:0xf
    v_add_f32_dpp v44, v44, v44 row_ror:4 row_mask:0xf bank_mask:0xf
    v_add_f32_dpp v44, v44, v44 row_ror:2 row_mask:0xf bank_mask:0xf
    v_add_f32_dpp v44, v44, v44 row_ror:1 row_mask:0xf bank_mask:0xf
    v_mul_f32 v45, {fx(1.0/448)}, v44
    v_readlane_b32 {sT3}, v44, 16
    v_readlane_b32 {sT0}, v45, 0
    v_readlane_b32 {sT1}, v45, 32
    v_mov_b32 v50, {sT0}
    v_fma_f32 v51, -v50, v50, {sT1}
    v_add_f32 v50, {sP}, v50
    v_max_f32 v51, 0, v51
    v_cvt_pk_bf16_f32 v50, v50, v51
    v_and_b32 v51, {sHI}, v50
    v_lshlrev_b32 v50, 16, v50
    v_add_f32 v51, {fx(1e-5)}, v51
    v_cvt_pk_bf16_f32 v51, 0, v51
    v_sqrt_f32 v51, v51
    v_cvt_pk_bf16_f32 v51, 0, v51
    v_rcp_f32 v57, v51
    v_mul_f32 v52, {fx(2.0**-68)}, v57
    v_mul_f32 v58, -v50, v57
    v_mul_f32 v53, -v50, v52
    """)
    for i in range(4): a(f"v_pk_fma_f32 v[{20+2*i}:{21+2*i}], v[{20+2*i}:{21+2*i}], v[52:53], v[52:53] op_sel:[0,0,1] op_sel_hi:[1,0,1]")
    for i in range(4): a(f"v_cvt_pk_bf16_f32 v{28+i}, v{20+2*i}, v{21+2*i}")
    a(f"""
    s_mov_b32 exec_hi, 0x00ffffff
    ds_write_b128 v18, v[28:31] offset:7680
    s_mov_b32 exec_lo, 0
    s_mov_b32 exec_hi, 0x80000000
    v_mul_f32 v56, {sT3}, v57
    v_fmac_f32 v56, v44, v58
    v_cvt_pk_bf16_f32 v56, 0, v56
    v_or_b32 v56, {sT2}, v56
    ds_write_b128 v48, v[56:59]
    s_mov_b64 exec, -1
    """)
    cst("lnw")
    a("s_waitcnt vmcnt(4) lgkmcnt(0)\ns_barrier")
    cst("B1")
    a(f"""
    s_cmp_eq_u32 {sWV}, 7
    s_cbranch_scc1 L_cand
    ds_read_b64_tr_b16 v[20:21], v19 offset:7680
    ds_read_b64_tr_b16 v[22:23], v19 offset:{7680+3840}
    s_waitcnt lgkmcnt(0)
    """)
    for i in range(4): a(f"v_or_b32 v{20+i}, s{sMSK+i}, v{20+i}")
    a(f"""
    global_store_dwordx4 v49, v[20:23], {XNB} sc1
    v_lshlrev_b32 v254, 1, v0
    global_load_ushort v255, v254, {DSK}
    s_branch L_pub
    L_cand:
    v_and_b32 v50, 0x70, v4
    v_add_u32 v50, {CANDL}, v50
    ds_read_b128 v[56:59], v50
    s_lshl_b32 {sT0}, {sTB}, 4
    s_add_u32 {sT0}, {sT0}, {WS_CAND}
    v_mov_b32 v51, {sT0}
    s_waitcnt lgkmcnt(0)
    v_max_f32_dpp v50, v56, v56 row_ror:4 row_mask:0xf bank_mask:0xf
    v_max_f32_dpp v50, v50, v50 row_ror:2 row_mask:0xf bank_mask:0xf
    v_max_f32_dpp v50, v50, v50 row_ror:1 row_mask:0xf bank_mask:0xf
    v_cmp_eq_u32 vcc, v50, v56
    s_and_b32 exec_lo, vcc_lo, 0xff
    s_mov_b32 exec_hi, 0
    global_store_dwordx4 v51, v[56:59], {WS} sc1
    s_mov_b64 exec, -1
    v_mov_b32 v254, 0
    global_load_ushort v255, v254, {DSK}
    L_pub:
    """)
    stamp(2)
    a("s_cmp_ge_u32 s2, 224\ns_cbranch_scc1 L_ffn")
    a(f"""
    s_waitcnt vmcnt(2)
    global_load_dwordx4 v[100:103], v89, s[4:5]
    global_load_dwordx4 v[104:107], v86, s[4:5]
    global_load_dwordx4 v[108:111], v88, s[4:5]
    global_load_dwordx4 v[112:115], v85, s[4:5]
    global_load_dwordx4 v[116:119], v87, s[4:5]
    """)
    role[0] = "conv"
    pr = opt.get("kprio", (2, 1, 0, 1))
    def setp(o, y, tag):
        if o == y: a(f"s_setprio {o}")
        else: a(f"s_setprio {o}\ns_cmp_lt_u32 {sWV}, 4\ns_cbranch_scc1 L_sp{tag}\ns_setprio {y}\nL_sp{tag}:")
    setp(pr[0], pr[1], "a")
    a(f"""
    v_mul_f32 v40, v92, v40
    v_max_f32 v44, abs(v42), abs(v43)
    v_exp_f32 v40, v40
    v_max_f32_dpp v44, v44, v44 row_ror:8 row_mask:0xf bank_mask:0xf
    v_cvt_pk_bf16_f32 v40, 0, v40
    v_pk_mul_f32 v[40:41], v[40:41], v[94:95]
    v_max_f32_dpp v44, v44, v44 row_ror:4 row_mask:0xf bank_mask:0xf
    v_pk_mul_f32 v[24:25], v[40:41], v[96:97] op_sel_hi:[1,0]
    v_fract_f32 v41, v41
    v_max_f32_dpp v44, v44, v44 row_ror:2 row_mask:0xf bank_mask:0xf
    v_fract_f32 v25, v25
    v_exp_f32 v40, v40
    v_max_f32_dpp v44, v44, v44 row_ror:1 row_mask:0xf bank_mask:0xf
    v_cos_f32 v60, v41
    v_sin_f32 v61, v41
    v_max_f32_dpp v44, v44, v44 row_bcast:15 row_mask:0xa bank_mask:0xf
    v_exp_f32 v24, v24
    v_cos_f32 v72, v25
    v_max_f32_dpp v44, v44, v44 row_bcast:31 row_mask:0xc bank_mask:0xf
    v_sin_f32 v73, v25
    v_readlane_b32 {sT0}, v44, 63
    v_pk_mul_f32 v[60:61], v[60:61], v[40:41] op_sel_hi:[1,0]
    v_pk_mul_f32 v[72:73], v[72:73], v[24:25] op_sel_hi:[1,0]
    s_lshr_b32 {sT0}, {sT0}, 23
    s_max_u32 {sT0}, {sT0}, 14
    s_sub_u32 {sP}, 267, {sT0}
    s_lshl_b32 {sP}, {sP}, 23
    """)
    FR = 120; GR = 141; G0 = 21
    S = {1: 173, 2: 174, 4: 175, 256: 176, 512: 177, 1024: 178}
    H = list(range(8)) + [256,258,260,262,512,516,768,772,1024,1280,1536,1792,2048]
    F = {h: FR + i for i, h in enumerate(H)}
    def wr(reg): return f"ds_write_addtid_b32 v{reg} offset:{(reg-FR)*RS}"
    def sq(d, x):
        return [f"v_pk_mul_f32 v[{d}:{d+1}], v[{x}:{x+1}], v[{x}:{x+1}] op_sel:[0,0] op_sel_hi:[0,1]",
                f"v_pk_fma_f32 v[{d}:{d+1}], v[{x}:{x+1}], v[{x}:{x+1}], v[{d}:{d+1}] op_sel:[1,1,0] op_sel_hi:[1,0,1] neg_lo:[0,1,0]"]
    def cv(d, x, conj): return [f"v_cvt_pk_f16_f32 v{d}, v{x}, {'-' if conj else ''}v{x+1}"]
    def hm(d, x, w):
        return [f"v_pk_mul_f16 v{d}, v{x}, v{w} op_sel:[0,0] op_sel_hi:[0,1]",
                f"v_pk_fma_f16 v{d}, v{x}, v{w}, v{d} op_sel:[1,1,0] op_sel_hi:[1,0,1] neg_lo:[0,1,0]", wr(d)]
    c1 = sq(62, 60) + cv(S[1], 60, True) + sq(64, 62) + cv(S[2], 62, True) + sq(66, 64) + cv(S[4], 64, True) + sq(68, 66) + cv(GR+1, 66, False) \
         + sq(70, 68) + cv(GR+2, 68, False) + [wr(GR+1)] + cv(GR+4, 70, False) + [wr(GR+2), wr(GR+4)]
    c2 = sq(74, 72) + cv(GR+8, 72, False) + sq(76, 74) + cv(GR+16, 74, False) + [wr(GR+8)] + sq(78, 76) + cv(S[256], 76, True) + [wr(GR+16)] \
         + sq(80, 78) + cv(S[512], 78, True) + [f"v_pk_mul_f32 v[42:43], v[42:43], {sPP} op_sel_hi:[1,0]"] + cv(S[1024], 80, True) + cv(F[0], 42, True) \
         + [f"s_sub_u32 {sT0}, {sT0}, 12", wr(F[0])]
    inter(c1, c2)
    a(f"s_lshl_b32 {sT0}, {sT0}, 23\nv_mul_f32 v46, {sT0}, v93")
    cst("seeds")
    a(f"""
    s_cmp_ge_u32 {sWV}, 4
    s_cbranch_scc1 L_nopf
    global_load_dwordx4 v[244:247], v97, s[4:5]
    global_load_dwordx4 v[248:251], v97, s[4:5] offset:16
    global_load_dwordx2 v[98:99], v84, s[4:5]
    global_load_dword v9, v91, s[100:101]
    L_nopf:
    """)
    setp(pr[2], pr[3], "b")
    fl = [(1,0,1),(2,0,2),(4,0,4),(256,0,256),(3,1,2),(512,0,512),(5,1,4),(6,2,4),(7,3,4),(258,2,256),(260,4,256),(262,6,256),
          (516,4,512),(768,256,512),(772,260,512),(1024,0,1024),(1280,256,1024),(1536,512,1024),(1792,768,1024),(2048,1024,1024)]
    pl = [hm(F[d], F[x], S[w]) for d, x, w in fl]
    gl = []
    for b in range(1, 5):
        for j in range(1, 1 << b): gl.append(hm(GR + (1 << b) + j, GR + j, GR + (1 << b)))
    A_ = pl + gl[23:]; B_ = gl[:23]
    if opt.get("ppipe", 1):
        seq = [p for xy in zip(A_, B_) for p in xy]
        for i in range(len(seq) + 2):
            if i < len(seq): a(seq[i][0])
            if 1 <= i <= len(seq): a(seq[i-1][1])
            if i >= 2: a(seq[i-2][2])
    else:
        for x, y in zip(A_, B_): inter(x, y)
    stamp(3)
    KF = 180
    gather = f"global_load_dwordx4 v[36:39], v90, {XNB} sc1"
    g1 = opt.get("g1", "km")
    a(f"""
    s_cmp_lt_u32 {sWV}, 4
    s_cbranch_scc1 L_pf2
    v_mov_b32 v44, 0
    v_mov_b32 v45, 0
    s_waitcnt vmcnt(0)
    ds_write_b64 v118, v[44:45]
    L_pf2:
    s_waitcnt vmcnt(4)
    """)
    cst("tbl")
    if g1 == "gen": a(gather)
    for st in range(8):
        a(f"ds_read_b128 v[{KF+8*st}:{KF+3+8*st}], v100 offset:{32*st}")
        a(f"ds_read_b128 v[{KF+4+8*st}:{KF+7+8*st}], v100 offset:{G0*RS+32*st}")
        if st >= 4:
            s2_ = st - 4
            a(f"s_waitcnt lgkmcnt(8)")
            a(f"v_mfma_f32_32x32x16_f16 v[20:35], v[{KF+8*s2_}:{KF+3+8*s2_}], v[{KF+4+8*s2_}:{KF+7+8*s2_}], {'0' if s2_==0 else 'v[20:35]'}")
    for s2_ in range(4, 8):
        a(f"s_waitcnt lgkmcnt({2*(7-s2_)})")
        a(f"v_mfma_f32_32x32x16_f16 v[20:35], v[{KF+8*s2_}:{KF+3+8*s2_}], v[{KF+4+8*s2_}:{KF+7+8*s2_}], v[20:35]")
    if g1 == "km": a(gather)
    a(f"s_mul_i32 {sKC}, {sCH}, {KCS}\ns_mul_i32 {sTT}, {sCH}, {TTS}")
    cst("kmfma")
    for s_ in range(3):
        for i in range(2): a(f"v_pk_mul_f32 v[{20+4*s_+2*i}:{21+4*s_+2*i}], v[{20+4*s_+2*i}:{21+4*s_+2*i}], v[46:47] op_sel_hi:[1,0]")
        a(f"ds_write_b128 v101, v[{20+4*s_}:{23+4*s_}] offset:{4*RS*s_}")
    a("s_waitcnt lgkmcnt(0)\ns_barrier")
    cst("B2")
    for nq in range(4): a(f"ds_read_b128 v[{20+4*nq}:{23+4*nq}], v102 offset:{256*nq}")
    if g1 == "B2": a(gather)
    a(f"""
    s_waitcnt lgkmcnt(2)
    v_pk_add_f32 v[20:21], v[20:21], v[24:25]
    v_pk_add_f32 v[22:23], v[22:23], v[26:27]
    s_waitcnt lgkmcnt(0)
    v_pk_add_f32 v[28:29], v[28:29], v[32:33]
    v_pk_add_f32 v[30:31], v[30:31], v[34:35]
    v_pk_add_f32 v[20:21], v[20:21], v[28:29]
    v_pk_add_f32 v[22:23], v[22:23], v[30:31]
    v_cvt_pk_bf16_f32 v28, v20, v21
    v_cvt_pk_bf16_f32 v29, v22, v23
    ds_write_b16 v104, v28
    ds_write_b16_d16_hi v105, v28
    ds_write_b16 v106, v29
    ds_write_b16_d16_hi v107, v29
    """)
    for i in range(7): a(f"ds_read_u16 v{20+i}, v{108+i}")
    def check():
        a(f"""
        s_waitcnt vmcnt(0)
        v_xor_b32 v40, s{sMSK}, v36
        v_bitop3_b32 v40, v40, v37, s{sMSK+1} bitop3:0xf6
        v_bitop3_b32 v40, v40, v38, s{sMSK+2} bitop3:0xf6
        v_bitop3_b32 v40, v40, v39, s{sMSK+3} bitop3:0xf6
        v_and_b32 v40, {TAGM}, v40
        v_cmp_ne_u32 vcc, 0, v40
        """)
        for i in range(4): a(f"v_add_u32 v{36+i}, s{sDEC+i}, v{36+i}")
        a("ds_write_b128 v103, v[36:39]")
    check()
    a(f"""
    s_waitcnt lgkmcnt(4)
    v_lshl_or_b32 v28, v21, 16, v20
    v_lshl_or_b32 v29, v23, 16, v22
    v_lshl_or_b32 v30, v22, 16, v21
    v_lshl_or_b32 v32, v23, 16, v22
    ds_write_b64 v115, v[28:29]
    s_waitcnt lgkmcnt(2)
    v_lshl_or_b32 v31, v24, 16, v23
    v_lshl_or_b32 v33, v25, 16, v24
    v_lshl_or_b32 v34, v24, 16, v23
    v_lshl_or_b32 v35, v26, 16, v25
    s_cmp_lg_u32 {sQ}, 0
    s_cbranch_scc1 L_nox
    v_add_u32 v98, {sKC}, v98
    v_add_u32 v99, {sTT}, v99
    ds_read_u16 v27, v98
    L_nox:
    ds_write_b64 v115, v[30:31] offset:{TCS}
    ds_write_b64 v115, v[32:33] offset:{2*TCS}
    ds_write_b64 v115, v[34:35] offset:{3*TCS}
    s_cbranch_scc1 L_nox2
    s_waitcnt lgkmcnt(3)
    ds_write_b16 v99, v27
    L_nox2:
    """)
    stamp(4)
    a(f"""
    s_cbranch_vccz L_poll1_done
    s_mov_b32 {sCNT}, 0
    L_poll1:
    s_mov_b64 exec, vcc
    s_waitcnt lgkmcnt(0)
    {gather}
    s_add_u32 {sCNT}, {sCNT}, 1
    """)
    check()
    a(f"""
    s_cmp_ge_u32 {sCNT}, {SPIN}
    s_cbranch_scc1 L_poll1_out
    s_cbranch_vccnz L_poll1
    L_poll1_out:
    s_mov_b64 exec, -1
    L_poll1_done:
    s_setprio 0
    s_cmp_ge_u32 {sWV}, 4
    s_cbranch_scc1 L_helper
    s_bitcmp1_b32 {sWV}, 0
    s_cbranch_scc1 L_ty1
    """)
    def mstream(tiles):
        LOOK = opt.get("look", 14); MINL = opt.get("minlook", 9)
        nus = max(tiles) - 3
        a("s_waitcnt lgkmcnt(0)\ns_barrier")
        stamp(5)
        q = lambda r: f"v[{r}:{r+3}]"
        fin = [(ti, nu, c - 4 - nu) for nu in range(4) for ti, c in enumerate(tiles) if 0 <= c - 4 - nu]
        flat = []
        for rho in range(8):
            prs = []
            order = [(mu, ti) for mu in range(5 if rho == 0 else 4) for ti in range(len(tiles))]
            if rho == 7: order = [(mu, ti) for ti in range(len(tiles)) for mu in range(4)]
            for mu, ti in order:
                c = tiles[ti]
                if mu <= c and (mu < 4 or c >= 4): prs.append(dict(acc=20 + 4 * ti, A=("A", rho + 8 * mu), B=("B", 8 * (c - mu) - rho), ti=ti))
            nu = rho - 1
            if 0 <= nu < nus:
                br = 52 if nu % 2 == 0 else 36
                prs.insert(1, dict(acc=br, A=("W", nu), B=244, zero=True))
                prs.insert(3, dict(acc=br + 4, A=("W", nu), B=248, zero=True, cvt=[f"v_cvt_pk_bf16_f32 v{76+4*nu+r}, v{br+r}, v{br+4+r}" for r in range(4)]))
            k = 0
            for (ti, nu2, mu2) in list(fin):
                if nu2 + 2 <= rho <= 6 and k < (2 if rho < 6 else 9) and rho >= 3:
                    prs.insert(min(2 + 4 * k, len(prs)), dict(acc=20 + 4 * ti, A=76 + 4 * nu2, B=("Z", mu2), ti=ti)); fin.remove((ti, nu2, mu2)); k += 1
            flat += prs
        assert not fin
        pool = list(range(120, 244, 4)); pi = [0]; reg = {}
        loads = []; need = []
        for o in flat:
            for f in ("A", "B"):
                key = o[f]
                if isinstance(key, int): continue
                if key not in reg:
                    if key[0] == "Z": r = 60 + 4 * key[1]
                    else: r = pool[pi[0] % len(pool)]; pi[0] += 1
                    reg[key] = r
                    if key[0] == "B": loads.append(f"ds_read_b128 {q(r)}, v117 offset:{64*(key[1]+7)}")
                    elif key[0] == "Z":
                        loads.append(f"ds_read2_b32 v[{r}:{r+1}], v118 offset0:{16*key[1]+3} offset1:{16*key[1]+2}")
                        loads.append(f"ds_read2_b32 v[{r+2}:{r+3}], v118 offset0:{16*key[1]+1} offset1:{16*key[1]}")
                    else:
                        ad, of = ("v116", 64 * (32 - key[1])) if key[0] == "A" else ("v117", 424 + 512 * key[1])
                        loads.append(f"ds_read_b64 v[{r}:{r+1}], {ad} offset:{of}")
                        loads.append(f"ds_read_b64 v[{r+2}:{r+3}], {ad} offset:{of+8}")
                o[f] = reg[key]
            need.append(len(loads))
        last = {o["ti"]: i for i, o in enumerate(flat) if "ti" in o}
        issued = 0; done = 0; stores = 0
        def issue(k):
            nonlocal issued
            while issued < min(k, len(loads)):
                a(loads[issued]); issued += 1
        def wait(k):
            nonlocal done
            n = issued - k
            assert 0 <= n <= 15
            a(f"s_waitcnt lgkmcnt({n})"); done = k
        issue(LOOK)
        first = set(); fill = []
        def outp(ti):
            return [f"v_cvt_pk_bf16_f32 v{42+2*ti}, v{20+4*ti}, v{21+4*ti}", f"v_cvt_pk_bf16_f32 v{43+2*ti}, v{22+4*ti}, v{23+4*ti}",
                    f"ds_write_b64 v119, v[{42+2*ti}:{43+2*ti}] offset:{YL+512*tiles[ti]}"]
        for i, o in enumerate(flat):
            if need[i] > done:
                k = need[min(i + 1, len(flat) - 1)]
                wait(k if (issued - k >= MINL or (issued == len(loads) and k <= issued)) else need[i])
            z = o.get("zero") or o["acc"] not in first
            a(f"v_mfma_f32_16x16x32_bf16 {q(o['acc'])}, {q(o['A'])}, {q(o['B'])}, {'0' if z else q(o['acc'])}")
            first.add(o["acc"])
            for x in o.get("cvt", []): fill.append((i + 4, x))
            if "ti" in o and last[o["ti"]] == i:
                for x in outp(o["ti"]): fill.append((i + 4, x))
            nxt = need[min(i + 1, len(flat) - 1)]
            cnt = 2 if issued + 1 - nxt < MINL else 1
            b4 = issued
            issue(min(issued + cnt, done + 15))
            room = 2 - (issued - b4) - (1 if nxt > done else 0)
            while room > 0 and fill and fill[0][0] <= i and (not fill[0][1].startswith("ds_") or done == len(loads)):
                a(fill.pop(0)[1]); room -= 1
        assert issued == len(loads) and done == len(loads)
        cst("mfmadone")
        for _, x in fill: a(x)
        a("s_waitcnt lgkmcnt(0)")
    def epi_prep():
        a(f"""
        ds_read_b64_tr_b16 v[60:61], v19
        ds_read_b64_tr_b16 v[62:63], v19 offset:3840
        ds_read_b64_tr_b16 v[64:65], v19 offset:7680
        ds_read_b64_tr_b16 v[66:67], v19 offset:{7680+3840}
        v_mov_b32 v53, {Y_IDX}
        s_mul_i32 {sT0}, {sTB}, 7168
        s_add_u32 {sT0}, {sT0}, 3584
        v_add_u32 v254, {sT0}, v254
        s_mov_b32 {sT1}, {BIAS}
        s_movk_i32 {sT2}, 0x3f80
        s_mov_b32 {sT3}, 0x3f800000
        v_lshlrev_b32 v40, 16, v255
        v_add_f32 v40, 1.0, v40
        s_waitcnt lgkmcnt(0)
        """)
        for i in range(4):
            a(f"v_add_u32 v{64+i}, {sT1}, v{64+i}\nv_lshlrev_b32 v{70+2*i}, 16, v{60+i}\nv_and_b32 v{71+2*i}, {sHI}, v{60+i}")
        for i in range(4): a(f"v_lshlrev_b32 v{80+2*i}, 16, v{64+i}\nv_and_b32 v{81+2*i}, {sHI}, v{64+i}")
        for i in range(4): a(f"v_pk_fma_f32 v[{70+2*i}:{71+2*i}], v[{80+2*i}:{81+2*i}], v[40:41], v[{70+2*i}:{71+2*i}] op_sel_hi:[1,0,1]")
    mstream([5, 6, 7])
    a("s_branch L_convdone\nL_ty1:")
    mstream([0, 1, 2, 3, 4])
    a(f"""
    L_convdone:
    s_barrier
    """)
    stamp(6)
    a(f"""
    s_branch L_prep
    L_helper:
    s_waitcnt lgkmcnt(0)
    s_barrier
    s_or_b32 {sT0}, s2, {sCH}
    s_cmp_lg_u32 {sT0}, 0
    s_cbranch_scc1 L_noE
    v_not_b32 v28, s36
    v_not_b32 v29, s37
    v_not_b32 v30, s38
    v_not_b32 v31, s39
    v_mov_b32 v32, {WS_E}
    s_mov_b64 exec, 1
    global_store_dwordx4 v32, v[28:31], {WS} sc1
    s_mov_b64 exec, -1
    L_noE:
    """)
    epi_prep()
    a(f"""
    s_barrier
    ds_read_b128 v[28:31], v119 offset:2048
    ds_read_b128 v[32:35], v119
    s_waitcnt lgkmcnt(1)
    global_store_dwordx4 v7, v[28:31], {YB} sc1
    s_waitcnt lgkmcnt(0)
    global_store_dwordx4 v7, v[32:35], {YB} offset:-4096 sc1
    """)
    stamp(7)
    role[0] = "all"
    a(f"""
    s_waitcnt vmcnt(0)
    s_barrier
    s_cmp_eq_u32 {sWV}, 7
    s_cbranch_scc1 L_fin
    s_branch L_epi2
    L_prep:
    """)
    epi_prep()
    a(f"""
    s_waitcnt vmcnt(0)
    s_cmp_ge_u32 s2, 224
    s_cbranch_scc1 L_epi2
    s_barrier
    L_epi2:
    global_load_dwordx4 v[20:23], v253, {YB} sc1
    global_load_dword v24, v53, {YB} sc1
    s_mov_b32 {sCNT}, 0
    L_poll2:
    s_waitcnt vmcnt(0)
    v_max3_u32 v25, v20, v21, v22
    v_max3_u32 v25, v25, v23, v24
    v_cmp_eq_u32 vcc, -1, v25
    s_add_u32 {sCNT}, {sCNT}, 1
    s_cbranch_vccz L_poll2_done
    s_cmp_ge_u32 {sCNT}, {SPIN}
    s_cbranch_scc1 L_poll2_done
    s_mov_b64 exec, vcc
    global_load_dwordx4 v[20:23], v253, {YB} sc1
    global_load_dword v24, v53, {YB} sc1
    s_branch L_poll2
    L_poll2_done:
    s_mov_b64 exec, -1
    """)
    stamp(8)
    a(f"v_readfirstlane_b32 {sIDX}, v24")
    for i in range(8): a(f"v_dot2c_f32_bf16 v{70+i}, {sT3 if i & 1 else sT2}, v{20+i//2}")
    a(f"s_lshr_b32 {sT0}, {sIDX}, 3\ns_cmp_eq_u32 {sT0}, {sTB}\ns_cbranch_scc1 L_owner")
    ostf = opt.get("ostf", "sc1")
    def ost(r): return f"global_store_short{'_d16_hi' if r & 1 else ''} v254, v{20+r//2}, {OUT} offset:{896*(r-4)} {ostf}"
    for i in range(4):
        a(f"v_cvt_pk_bf16_f32 v{20+i}, v{70+2*i}, v{71+2*i}\n{ost(2*i)}\n{ost(2*i+1)}")
    a(f"s_branch L_fin\nL_owner:\ns_and_b32 {sT0}, {sIDX}, 7")
    for i in range(4): a(f"v_cvt_pk_bf16_f32 v{20+i}, v{70+2*i}, v{71+2*i}")
    for r in range(8): a(f"s_cmp_eq_u32 {sT0}, {r}\ns_cbranch_scc1 L_sk{r}\n{ost(r)}\nL_sk{r}:")
    a("s_branch L_fin")
    role[0] = "ffn"
    def perms(src, dst):
        for kp in range(4):
            for dw in range(4):
                a(f"v_perm_b32 v{dst+4*(2*dw)+kp}, v{src+4*(2*kp+1)+dw}, v{src+4*(2*kp)+dw}, {sT2}")
                a(f"v_perm_b32 v{dst+4*(2*dw+1)+kp}, v{src+4*(2*kp+1)+dw}, v{src+4*(2*kp)+dw}, {sT3}")
    def gemv(afrag, w, acc):
        for e in range(8): a(f"v_mfma_f32_16x16x32_bf16 v[{acc+4*e}:{acc+4*e+3}], v[{afrag}:{afrag+3}], v[{w+4*e}:{w+4*e+3}], 0")
    def fold(acc, res):
        for e in range(4): a(f"v_add_f32_dpp v{res+e}, v{acc+4*e+1}, v{acc+4*e} row_shl:8 row_mask:0xf bank_mask:0x3")
        for e in range(4, 8): a(f"v_add_f32_dpp v{res+e-4}, v{acc+4*e}, v{acc+4*e+1} row_shr:8 row_mask:0xf bank_mask:0xc")
    a(f"""
    L_ffn:
    s_cmp_eq_u32 {sWV}, 7
    s_cbranch_scc1 L_ffn7
    s_cmp_ge_u32 {sFI}, 28
    s_cbranch_scc1 L_spare
    v_lshrrev_b32 v50, 3, v2
    v_lshl_add_u32 v50, v50, 2, v3
    v_and_b32 v51, 7, v2
    v_lshlrev_b32 v51, 4, v51
    s_movk_i32 {sT0}, {8*3584}
    v_mad_u32_u24 v52, v50, {sT0}, v51
    s_mul_i32 {sT0}, {sWV}, {64*3584}
    s_lshl_b32 {sT1}, {sFI}, 7
    s_add_u32 {sT0}, {sT0}, {sT1}
    s_add_u32 {sT0}, {sT0}, 3584
    v_add_u32 v52, {sT0}, v52
    v_add_u32 v53, {3*3584}, v52
    v_add_u32 v54, {6*3584}, v52
    s_movk_i32 {sT0}, {8*896}
    v_mad_u32_u24 v55, v50, {sT0}, v51
    s_mul_i32 {sT0}, {sFI}, {64*896}
    s_lshl_b32 {sT1}, {sWV}, 7
    s_add_u32 {sT0}, {sT0}, {sT1}
    s_add_u32 {sT0}, {sT0}, 3584
    v_add_u32 v55, {sT0}, v55
    """)
    for (base, ptr) in ((60, WG_), (92, WU)):
        for e in range(8): a(f"global_load_dwordx4 v[{base+4*e}:{base+4*e+3}], v{52+e//3}, {ptr} offset:{3584*(e%3-1)}")
    for e in range(8): a(f"global_load_dwordx4 v[{124+4*e}:{127+4*e}], v55, {WD} offset:{896*(e-4)}")
    a(f"""
    s_mov_b32 {sT2}, 0x05040100
    s_mov_b32 {sT3}, 0x07060302
    v_and_b32 v50, 1, v2
    v_lshlrev_b32 v50, 6, v50
    v_lshl_add_u32 v50, v3, 4, v50
    s_lshl_b32 {sT0}, {sWV}, 7
    v_add_u32 v50, {sT0}, v50
    v_lshrrev_b32 v56, 3, v2
    v_lshlrev_b32 v56, 4, v56
    v_lshl_add_u32 v56, v51, 1, v56
    s_lshl_b32 {sT1}, {sWV}, 9
    v_add_u32 v56, {sT1}, v56
    v_lshlrev_b32 v57, 2, v1
    v_lshl_add_u32 v58, v1, 1, {sT0}
    s_lshl_b32 {sT0}, s2, 13
    s_lshl_b32 {sT1}, {sWV}, 8
    s_add_u32 {sT0}, {sT0}, {sT1}
    v_add_u32 v59, {sT0}, v4
    s_waitcnt vmcnt(16)
    """)
    perms(60, 156); a("s_waitcnt vmcnt(8)"); perms(92, 188); a("s_waitcnt vmcnt(0)"); perms(124, 220)
    stamp(3)
    a(f"s_barrier\nds_read_b128 v[20:23], v50 offset:{FXN}\ns_waitcnt lgkmcnt(0)")
    stamp(5)
    gemv(20, 156, 60); gemv(20, 188, 92)
    fold(60, 24); fold(92, 28)
    a(f"""
    s_mov_b64 exec, 0xffff
    ds_write_b128 v56, v[24:27] offset:{FGP}
    ds_write_b128 v56, v[28:31] offset:{FGP+256}
    s_mov_b64 exec, -1
    s_waitcnt lgkmcnt(0)
    s_barrier
    """)
    for p in range(7): a(f"ds_read2st64_b32 v[{24+2*p}:{25+2*p}], v57 offset0:{FGP//256+2*p} offset1:{FGP//256+2*p+1}")
    a(f"""
    s_waitcnt lgkmcnt(3)
    v_pk_add_f32 v[24:25], v[24:25], v[26:27]
    v_pk_add_f32 v[28:29], v[28:29], v[30:31]
    s_waitcnt lgkmcnt(0)
    v_pk_add_f32 v[32:33], v[32:33], v[34:35]
    v_pk_add_f32 v[24:25], v[24:25], v[28:29]
    v_pk_add_f32 v[32:33], v[32:33], v[36:37]
    v_pk_add_f32 v[24:25], v[24:25], v[32:33]
    v_mul_f32 v27, {fx(-LOG2E)}, v24
    v_mul_f32 v26, v24, v25
    v_exp_f32 v27, v27
    v_add_f32 v27, 1.0, v27
    v_rcp_f32 v27, v27
    v_mul_f32 v26, v26, v27
    v_cvt_pk_bf16_f32 v26, v26, v26
    ds_write_b16 v58, v26 offset:{FH}
    ds_read_b128 v[20:23], v50 offset:{FH}
    s_waitcnt lgkmcnt(0)
    """)
    gemv(20, 220, 60); fold(60, 24)
    a(f"""
    s_mov_b64 exec, 0xffff
    global_store_dwordx4 v59, v[24:27], {YB} sc1
    s_mov_b64 exec, -1
    """)
    stamp(7)
    a("s_branch L_prep\nL_spare:\ns_waitcnt vmcnt(0)\ns_barrier\ns_branch L_prep")
    role[0] = "ffn7"
    a(f"""
    L_ffn7:
    v_add_u32 v50, {WS_CAND}, v4
    s_not_b32 {sT3}, s39
    s_mov_b32 {sCNT}, 0
    s_waitcnt vmcnt(0)
    L_poll3:
    """)
    for i in range(4): a(f"global_load_dwordx4 v[{20+4*i}:{23+4*i}], v50, {WS} offset:{1024*i} sc1")
    a(f"""
    s_waitcnt vmcnt(0)
    v_xor_b32 v51, {sT3}, v23
    v_bitop3_b32 v51, v51, v27, {sT3} bitop3:0xf6
    v_bitop3_b32 v51, v51, v31, {sT3} bitop3:0xf6
    v_bitop3_b32 v51, v51, v35, {sT3} bitop3:0xf6
    v_cmp_ne_u32 vcc, 0, v51
    s_add_u32 {sCNT}, {sCNT}, 1
    s_cmp_ge_u32 {sCNT}, {SPIN}
    s_cbranch_scc1 L_poll3_done
    s_mov_b64 exec, vcc
    s_cbranch_execnz L_poll3
    L_poll3_done:
    s_mov_b64 exec, -1
    """)
    stamp(3)
    a(f"""
    s_cmp_ge_u32 {sFI}, 28
    s_cbranch_scc1 L_spare7
    v_max3_f32 v51, v20, v24, v28
    v_max_f32 v51, v51, v32
    v_cmp_eq_u32 vcc, v51, v24
    v_max_f32_dpp v52, v51, v51 row_ror:8 row_mask:0xf bank_mask:0xf
    v_cmp_eq_u32 s[62:63], v51, v28
    v_cndmask_b32 v21, v21, v25, vcc
    v_max_f32_dpp v52, v52, v52 row_ror:4 row_mask:0xf bank_mask:0xf
    v_cndmask_b32 v22, v22, v26, vcc
    v_cmp_eq_u32 vcc, v51, v32
    v_max_f32_dpp v52, v52, v52 row_ror:2 row_mask:0xf bank_mask:0xf
    v_cndmask_b32 v21, v21, v29, s[62:63]
    v_cndmask_b32 v22, v22, v30, s[62:63]
    v_max_f32_dpp v52, v52, v52 row_ror:1 row_mask:0xf bank_mask:0xf
    v_cndmask_b32 v21, v21, v33, vcc
    v_cndmask_b32 v22, v22, v34, vcc
    v_max_f32_dpp v52, v52, v52 row_bcast:15 row_mask:0xa bank_mask:0xf
    v_max_f32_dpp v52, v52, v52 row_bcast:31 row_mask:0xc bank_mask:0xf
    v_readlane_b32 {sP}, v52, 63
    s_and_b32 {sIDX}, {sP}, 0x7ff
    s_mul_i32 {sT0}, {sIDX}, 896
    v_add_u32 v53, {sT0}, v4
    s_mov_b32 exec_hi, 0x00ffffff
    global_load_dwordx4 v[10:13], v53, {X}
    s_mov_b32 exec_hi, -1
    v_cmp_eq_u32 vcc, {sP}, v51
    s_ff1_i32_b64 {sT1}, vcc
    s_and_b32 {sT1}, {sT1}, 63
    v_readlane_b32 {sT2}, v21, {sT1}
    v_readlane_b32 {sT3}, v22, {sT1}
    s_cmp_lg_u32 {sFI}, 0
    s_cbranch_scc1 L_noidx
    v_mov_b32 v54, {Y_IDX}
    v_mov_b32 v55, {sIDX}
    s_mov_b64 exec, 1
    global_store_dword v54, v55, {YB} sc1
    s_mov_b64 exec, -1
    s_waitcnt vmcnt(1)
    s_branch L_idx2
    L_noidx:
    s_waitcnt vmcnt(0)
    L_idx2:
    """)
    stamp(4)
    for i in range(4): a(f"v_lshlrev_b32 v{20+2*i}, 16, v{10+i}\nv_and_b32 v{21+2*i}, {sHI}, v{10+i}")
    for i in range(4): a(f"v_pk_fma_f32 v[{20+2*i}:{21+2*i}], v[{20+2*i}:{21+2*i}], s[46:47], s[46:47] op_sel:[0,0,1] op_sel_hi:[1,0,1]")
    for i in range(4): a(f"v_cvt_pk_bf16_f32 v{28+i}, v{20+2*i}, v{21+2*i}")
    a(f"""
    ds_write_b128 v4, v[28:31] offset:{FXN}
    ds_write_b128 v4, v[10:13] offset:{FXR}
    s_waitcnt lgkmcnt(0)
    s_barrier
    s_and_b32 {sT1}, {sFI}, 3
    s_lshl_b32 {sT1}, {sT1}, 2
    v_lshrrev_b32 v50, 2, v2
    v_add_u32 v50, {sT1}, v50
    v_and_b32 v51, 7, v50
    v_lshrrev_b32 v50, 3, v50
    v_lshlrev_b32 v51, 3, v51
    v_lshl_add_u32 v50, v50, 2, v51
    v_and_b32 v51, 3, v2
    s_lshr_b32 {sT1}, {sFI}, 2
    s_lshl_b32 {sT1}, {sT1}, 6
    v_add3_u32 v50, v50, v51, {sT1}
    v_lshlrev_b32 v51, 1, v50
    global_load_ushort v40, v51, {DSK}
    ds_read_u16 v41, v51 offset:{FXN}
    ds_read_u16 v42, v51 offset:{FXR}
    v_add_u32 v53, {sT0}, v51
    v_lshrrev_b32 v52, 1, v50
    v_and_b32 v50, 1, v50
    v_lshlrev_b32 v52, 13, v52
    v_lshl_add_u32 v52, v50, 4, v52
    s_lshr_b32 {sT1}, {sIDX}, 3
    s_lshl_b32 {sT1}, {sT1}, 5
    s_and_b32 {sT2}, {sIDX}, 6
    s_lshl_b32 {sT2}, {sT2}, 1
    s_add_u32 {sT1}, {sT1}, {sT2}
    v_add_u32 v52, {sT1}, v52
    v_lshlrev_b32 v54, 13, v3
    v_lshl_add_u32 v54, v2, 2, v54
    s_lshl_b32 {sT1}, {sFI}, 6
    s_add_u32 {sT1}, {sT1}, {Y_PART}
    v_add_u32 v54, {sT1}, v54
    s_barrier
    """)
    for p in range(1, 7): a(f"v_add_u32 v{54+p}, {32768*p}, v54")
    a(f"""
    s_and_b32 {sT1}, {sP}, {sHI}
    v_mov_b32 v43, {sT1}
    v_mul_f32 v43, {fx(-LOG2E)}, v43
    v_exp_f32 v43, v43
    v_add_f32 v43, 1.0, v43
    v_rcp_f32 v43, v43
    s_waitcnt vmcnt(0) lgkmcnt(0)
    v_lshlrev_b32 v40, 16, v40
    v_lshlrev_b32 v41, 16, v41
    v_lshlrev_b32 v42, 16, v42
    v_add_f32 v40, 1.0, v40
    v_fmac_f32 v42, v40, v41
    s_bitcmp1_b32 {sIDX}, 0
    s_cselect_b32 {sT1}, 16, 0
    s_lshl_b32 {sT1}, 0x3f80, {sT1}
    s_mov_b32 {sCNT}, 0
    L_poll4:
    """)
    for p in range(7): a(f"global_load_dword v{20+p}, v{54+p}, {YB} sc1")
    a(f"""
    global_load_dword v27, v52, {YB} sc1
    s_waitcnt vmcnt(0)
    v_max3_u32 v28, v20, v21, v22
    v_max3_u32 v29, v23, v24, v25
    v_max3_u32 v28, v28, v26, v27
    v_max_u32 v28, v28, v29
    v_cmp_eq_u32 vcc, -1, v28
    s_add_u32 {sCNT}, {sCNT}, 1
    s_cmp_ge_u32 {sCNT}, {SPIN}
    s_cbranch_scc1 L_poll4_done
    s_mov_b64 exec, vcc
    s_cbranch_execnz L_poll4
    L_poll4_done:
    s_mov_b64 exec, -1
    """)
    stamp(8)
    a(f"""
    v_pk_add_f32 v[20:21], v[20:21], v[22:23]
    v_add_f32 v24, v24, v26
    v_dot2c_f32_bf16 v42, {sT1}, v27
    v_pk_add_f32 v[20:21], v[20:21], v[24:25]
    v_add_f32 v20, v20, v21
    v_mov_b32 v21, v20
    v_permlane32_swap_b32 v20, v21
    v_add_f32 v20, v20, v21
    v_mov_b32 v21, v20
    v_permlane16_swap_b32 v20, v21
    v_add_f32 v20, v20, v21
    v_fmac_f32 v42, v20, v43
    v_cvt_pk_bf16_f32 v20, v42, v42
    s_mov_b64 exec, 0xffff
    global_store_short v53, v20, {OUT} {ostf}
    s_mov_b64 exec, -1
    s_branch L_fin
    L_spare7:
    s_barrier
    L_fin:
    """)
    if diag:
        a("s_waitcnt vmcnt(0)")
        stamp(9)
        a(f"""
        s_lshl_b32 {sT0}, s2, 3
        s_add_u32 {sT0}, {sT0}, {sWV}
        s_lshl_b32 {sT0}, {sT0}, 6
        s_add_u32 {sT0}, {sT0}, {WS_STAMP}
        v_mov_b32 v50, {sT0}
        """)
        for i in range(10): a(f"v_mov_b32 v{20+i}, s{64+2*i}")
        a(f"v_mov_b32 v30, {sCNT}\nv_mov_b32 v31, 0\ns_mov_b64 exec, 1")
        for i in range(3): a(f"global_store_dwordx4 v50, v[{20+4*i}:{23+4*i}], {WS} offset:{16*i}")
    if opt.get("cyc"):
        a("s_waitcnt vmcnt(0)")
        cst("end")
        a(f"""
        s_lshl_b32 {sT0}, s2, 3
        s_add_u32 {sT0}, {sT0}, {sWV}
        s_lshl_b32 {sT0}, {sT0}, 7
        s_add_u32 {sT0}, {sT0}, {WS_STAMP}
        v_mov_b32 v50, {sT0}
        """)
        for i in range(28): a(f"v_mov_b32 v{20+i}, s{68+i}")
        a("s_mov_b64 exec, 1")
        for i in range(7): a(f"global_store_dwordx4 v50, v[{20+4*i}:{23+4*i}], {WS} offset:{16*i}")
    if opt.get("hold"):
        a(f"""
        L_hold:
        s_memrealtime s[66:67]
        s_waitcnt lgkmcnt(0)
        s_sub_u32 s66, s66, s64
        s_cmp_lt_u32 s66, {opt['hold']}
        s_cbranch_scc1 L_hold
        """)
    a("L_end:\ns_endpgm")
    rep = []
    body = hz.fix(a.text(), rep)
    if opt.get("verbose"):
        for r in rep: print("nop", r)
    if opt.get("align", 1): body = align.fix(body)
    body += "\n.p2align 7\n"
    for nm, tb in (("box_tab", box_table()), ("xtra_tab", extra_table()), ("addr_tab", addr_table())):
        body += f".type {nm},@object\n{nm}:\n"
        for i in range(0, len(tb), 16): body += ".long " + ",".join(str(v) for v in tb[i:i+16]) + "\n"
        body += f".size {nm}, {4*len(tb)}\n"
    body += "L_code_end:\n"
    return single_file(body, 256, 512, LDS_BYTES, 256, sgpr=102)

def emit(name, opt):
    open(f"{name}.s", "w").write(gen(dict(opt)))
    open(f"{name}_diag.s", "w").write(gen(dict(opt, diag=True, verbose=False)))
    o = dict(opt, cyc=True, verbose=False)
    open(f"{name}_cyc.s", "w").write(gen(o))
    open(f"{name}_cyc.names", "w").write(" ".join(o["cnames"]))

def emit_hold(name, opt):
    open(f"{name}_hstart.s", "w").write(gen(dict(opt, hold=2000)))
    for nm, h in dict(rows=("all",1), pub=("all",2), kgen=("conv",3), tbl=("conv",4), hop1=("conv",5), conv=("conv",6), ypub=("conv",7), hop2=("all",8),
                      wts=("ffn",3), cand=("ffn7",3), xrow=("ffn7",4), part=("ffn",7), parts=("ffn7",8)).items():
        open(f"{name}_h{nm}.s", "w").write(gen(dict(opt, hold=2000, holdat=h)))

if __name__ == "__main__":
    base = {"ppipe": 0, "kprio": (1, 1, 0, 0)}
    emit("k4", dict(base, verbose="-v" in sys.argv))
    emit("k4a", dict(base, kprio=(2, 1, 0, 1)))
    emit("k4b", dict(base, g1="B2"))
    emit("k4c", dict(base, g1="gen"))
    if "-h" in sys.argv: emit_hold("k4", base)
```
